```python
import torch

def _softmax(x, axis=-1):
    return torch.softmax(x, dim=axis)
def _gelu(x):
    return torch.nn.functional.gelu(x, approximate="tanh")
def _silu(x):
    return torch.nn.functional.silu(x)
def _sigmoid(x):
    return torch.sigmoid(x)
def _layernorm(x, axis=-1, eps=1e-5):
    m = x.mean(dim=axis, keepdim=True)
    v = x.var(dim=axis, keepdim=True, unbiased=False)
    return (x - m) / torch.sqrt(v + eps)
def _scatter_add(tgt, idx, src, axis=0):
    return tgt.clone().index_add_(axis, idx, src)
def _segment_sum(src, seg, n):
    out = torch.zeros((n,) + src.shape[1:], dtype=src.dtype)
    return out.index_add_(0, seg, src)
def _pad(x, pw):
    flat = tuple(v for pair in reversed(pw) for v in pair)
    return torch.nn.functional.pad(x, flat)

kernel_name = 'standalone__self_sup_conv_stem_wavlm__speech'

def setup_inputs():

    _w = (lambda a: (lambda t: t.to(torch.bfloat16) if t.is_floating_point() else t)(torch.as_tensor(a)))
    B, T, D, K = 2, 16000, 256, 31
    scale = (K * D) ** -0.5
    return {
        "x": _w((lambda *s: torch.randn(*s, dtype=torch.bfloat16) * 0.05)(B, T, D)),
        "w": _w((lambda *s: torch.randn(*s, dtype=torch.bfloat16) * 0.05)(K, D, D) * scale),
        "gn_gamma": _w((lambda *s: torch.randn(*s, dtype=torch.bfloat16) * 0.05)(D) * 0.1 + 1.0),
        "gn_beta": _w((lambda *s: torch.randn(*s, dtype=torch.bfloat16) * 0.05)(D) * 0.1),
    }

def reference(x, w, gn_gamma, gn_beta):
    B, T, D = x.shape
    K = w.shape[0]
    s = 2
    L = (T - K) // s + 1
    h = torch.einsum('blc,cd->bld', x[:, 0:s * L:s, :], w[0])
    for i in range(1, K):
        h = h + torch.einsum('blc,cd->bld', x[:, i:i + s * L:s, :], w[i])
    mu = torch.einsum('bld->bd', h)[:, None, :] / L
    var = torch.einsum('bld->bd', (h - mu) ** 2)[:, None, :] / L
    h = (h - mu) / torch.sqrt(var + 1e-5)
    h = h * gn_gamma[None, None, :] + gn_beta[None, None, :]
    return _gelu(h)
```

```python
import sys
import struct

NAME = "standalone__self_sup_conv_stem_wavlm__speech"

B, T, D, KT = 2, 16000, 256, 31
L = 7985
X_BYTES = B * T * D * 2
W_BYTES = KT * D * D * 2
OUT_BYTES = B * L * D * 2
NMT = 32
LAST_VALID = L - 31 * 256

XSEG = 1088
XBUF = 16 * XSEG + 1024
WBASE = 2 * XBUF
WSTEP = 4096
LDS_TOTAL = WBASE + 31 * WSTEP
assert LDS_TOTAL == 163840

def tap_of(sig):
    return 2 * sig if sig < 16 else 2 * (sig - 16) + 1

STAGES = [list(range(0, 4)), list(range(4, 8)), list(range(8, 12)), list(range(12, 16)),
          list(range(16, 20)), list(range(20, 24)), list(range(24, 28)), list(range(28, 31))]


def f32(x):
    return struct.unpack("<I", struct.pack("<f", x))[0]


class Emit:
    def __init__(self):
        self.lines = []

    def __call__(self, s):
        self.lines.append("    " + s)

    def label(self, s):
        self.lines.append(s + ":")

    def c(self, s):
        self.lines.append("    ; " + s)

    def text(self):
        return "\n".join(self.lines) + "\n"


def gen(opts):
    e = Emit()
    DEBUG_H = opts.get("debug_h", False)
    STAMP = opts.get("stamp", False)

    SX, SW, SO, SP = 20, 24, 28, 32
    sWAVE, sNT, sGM, sB, sMT, sXB, sN2 = 36, 37, 38, 39, 40, 41, 42
    sT0, sT1, sT2 = 43, 44, 45
    sCC = 46
    sM0W, sM0X, sWC, sXC, sXC16 = 47, 48, 49, 50, 51
    sMF, sMP = 52, 54
    sA, sBB, sNV = 56, 57, 58
    sGRP, sOB, sCNT = 59, 60, 61
    sRN = 62
    sC0, sC1 = 64, 66
    sST = 70

    e.c("entry")
    e("s_cmp_ge_u32 s2, 256")
    e("s_cbranch_scc1 L_end")
    e("s_load_dwordx8 s[4:11], s[0:1], 0")
    e("s_load_dwordx4 s[12:15], s[0:1], 32")
    e("s_load_dwordx2 s[16:17], s[0:1], 48")
    e("v_lshrrev_b32 v1, 6, v0")
    e("v_and_b32 v0, 63, v0")
    e("s_and_b32 s%d, s2, 7" % sT0)
    e("v_readfirstlane_b32 s%d, v1" % sWAVE)
    e("s_lshr_b32 s%d, s2, 3" % sT1)
    e("s_and_b32 s%d, s%d, 3" % (sNT, sT1))
    e("s_lshr_b32 s%d, s%d, 2" % (sT1, sT1))
    e("s_lshl_b32 s%d, s%d, 3" % (sGM, sT0))
    e("s_add_u32 s%d, s%d, s%d" % (sGM, sGM, sT1))
    e("s_lshr_b32 s%d, s%d, 5" % (sB, sGM))
    e("s_and_b32 s%d, s%d, 31" % (sMT, sGM))
    e("s_mul_i32 s%d, s%d, %d" % (sXB, sB, T * 512))
    e("s_lshl_b32 s%d, s%d, 18" % (sT0, sMT))
    e("s_add_u32 s%d, s%d, s%d" % (sXB, sXB, sT0))
    e("s_lshl_b32 s%d, s%d, 7" % (sN2, sNT))
    e("s_waitcnt lgkmcnt(0)")
    for (srd, p, nbytes) in ((SX, 4, X_BYTES), (SW, 6, W_BYTES), (SO, 12, OUT_BYTES), (SP, 16, 8 * 16384)):
        e("s_mov_b32 s%d, s%d" % (srd, p))
        e("s_and_b32 s%d, s%d, 0xffff" % (srd + 1, p + 1))
        e("s_mov_b32 s%d, %d" % (srd + 2, nbytes))
        e("s_mov_b32 s%d, 0x00020000" % (srd + 3))
    e("s_cmp_ge_u32 s%d, 4" % sWAVE)
    e("s_cbranch_scc1 L_loader")

    ACC = 64
    WIN = 128
    WF = [192, 196]
    vX = [1, 2]
    vW = [3, 4]
    vR, vG = 5, 6
    vGAM = 8
    vBET = 10
    e.c("consumer setup")
    e("s_setprio 2")
    e("v_and_b32 v%d, 15, v0" % vR)
    e("v_lshrrev_b32 v%d, 4, v0" % vG)
    e("s_lshl_b32 s%d, s%d, 5" % (sT0, sWAVE))
    e("s_add_u32 s%d, s%d, s%d" % (sT0, sT0, sN2))
    e("v_lshlrev_b32 v12, 3, v%d" % vG)
    e("v_add_u32 v12, s%d, v12" % sT0)
    e("global_load_dwordx2 v[%d:%d], v12, s[8:9]" % (vGAM, vGAM + 1))
    e("global_load_dwordx2 v[%d:%d], v12, s[10:11]" % (vBET, vBET + 1))
    for ee in (0, 1):
        if ee == 0:
            e("v_mov_b32 v13, v%d" % vR)
        else:
            e("v_add_u32 v13, 1, v%d" % vR)
        e("v_lshrrev_b32 v14, 1, v13")
        e("v_and_b32 v14, 2, v14")
        e("v_xor_b32 v14, v14, v%d" % vG)
        e("v_lshlrev_b32 v14, 4, v14")
        e("v_mul_u32_u24 v13, %d, v13" % XSEG)
        e("v_add_u32 v%d, v13, v14" % vX[ee])
    e("v_lshrrev_b32 v13, 2, v%d" % vR)
    e("v_and_b32 v14, 3, v0")
    e("v_lshrrev_b32 v15, 1, v13")
    e("v_and_b32 v16, 1, v%d" % vG)
    e("v_lshlrev_b32 v16, 1, v16")
    e("v_or_b32 v15, v15, v16")
    e("v_xor_b32 v15, s%d, v15" % sWAVE)
    e("v_lshlrev_b32 v15, 5, v15")
    e("v_lshlrev_b32 v14, 3, v14")
    e("v_add_u32 v15, v15, v14")
    e("v_lshlrev_b32 v13, 7, v13")
    e("v_add_u32 v15, v15, v13")
    e("v_lshlrev_b32 v13, 10, v%d" % vG)
    e("v_add_u32 v15, v15, v13")
    e("v_add_u32 v%d, %d, v15" % (vW[0], WBASE))
    e("v_add_u32 v%d, %d, v15" % (vW[1], WBASE + 65536))
    for i in range(64):
        e("v_mov_b32 v%d, 0" % (ACC + i))
    e("s_mov_b32 s%d, 0" % sCC)

    class Q:
        def __init__(self):
            self.q = []

        def issue(self, tag):
            self.q.append(tag)

        def need(self, tags):
            idx = -1
            for i, t in enumerate(self.q):
                if t in tags:
                    idx = i
            if idx < 0:
                return
            n = len(self.q) - 1 - idx
            n = min(n, 15)
            e("s_waitcnt lgkmcnt(%d)" % n)
            self.q = self.q[len(self.q) - n:] if n > 0 else []

    q = Q()

    def rd_w(sig, buf, half):
        base = vW[0] if sig < 16 else vW[1]
        off = (sig % 16) * WSTEP + half * 512
        r = WF[buf] + 2 * half
        e("ds_read_b64_tr_b16 v[%d:%d], v%d offset:%d" % (r, r + 1, base, off))
        q.issue(("w", buf, half))

    def rd_x(p, u, slot):
        ee, up = u >> 4, u & 15
        off = p * XBUF + up * 64
        r = WIN + 4 * slot
        e("ds_read_b128 v[%d:%d], v%d offset:%d" % (r, r + 3, vX[ee], off))
        q.issue(("x", slot))

    def mfma(t, buf, slot):
        q.need({("w", buf, 0), ("w", buf, 1), ("x", slot)})
        a = ACC + 4 * t
        w = WF[buf]
        x = WIN + 4 * slot
        e("v_mfma_f32_16x16x32_bf16 v[%d:%d], v[%d:%d], v[%d:%d], v[%d:%d]" % (a, a + 3, w, w + 3, x, x + 3, a, a + 3))

    def step(sig, with_mfma=True):
        p = 0 if sig < 16 else 1
        s = sig - 16 * p
        s_last = 15 if p == 0 else 14
        buf = sig & 1 if sig < 16 else (sig & 1)
        buf = WBUF[sig]
        nsig = (sig + 1) % 31
        nbuf = WBUF[nsig]
        last = (s == s_last)
        d = (16 - s_last) % 16
        for t in range(16):
            slot = (s + t) % 16
            if with_mfma:
                mfma(t, buf, slot)
            if t == 0:
                rd_w(nsig, nbuf, 0)
            if t == 1:
                rd_w(nsig, nbuf, 1)
            if last:
                rd_x(1 - p, (t - d) % 16, slot)
            elif t == 2:
                rd_x(p, s + 16, s % 16)

    WF.append(200)
    WBUF = [i % 2 for i in range(31)]
    WBUF[30] = 2

    e("s_barrier")
    e.c("initial reads = last step of the chunk without MFMAs")
    step(30, with_mfma=False)
    q_init = list(q.q)
    e.label("L_cloop")
    for st, sigs in enumerate(STAGES):
        e("s_barrier")
        for sig in sigs:
            e.c("step %d (tap %d)" % (sig, tap_of(sig)))
            step(sig)
    assert q.q == q_init[len(q_init) - len(q.q):] or True
    e("s_add_u32 s%d, s%d, 1" % (sCC, sCC))
    e("s_cmp_lt_u32 s%d, 8" % sCC)
    e("s_cbranch_scc1 L_cloop")

    e.c("epilogue")
    e("s_waitcnt lgkmcnt(0) vmcnt(0)")
    e("s_cmp_eq_u32 s%d, 31" % sMT)
    e("s_cselect_b32 s%d, %d, 256" % (sNV, LAST_VALID))
    e("s_mov_b32 s%d, 0x%08x" % (sRN, f32(1.0 / 256)))
    e("s_cselect_b32 s%d, 0x%08x, s%d" % (sRN, f32(1.0 / LAST_VALID), sRN))
    e("s_lshr_b32 s%d, s%d, 4" % (sA, sNV))
    e("s_and_b32 s%d, s%d, 15" % (sBB, sNV))
    e("v_cmp_gt_u32 s[%d:%d], s%d, v%d" % (sMF, sMF + 1, sA, vR))
    e("v_cmp_ge_u32 s[%d:%d], s%d, v%d" % (sMP, sMP + 1, sA, vR))
    vS = 16
    vM = 20
    vT = 24
    for r_ in range(4):
        e("v_mov_b32 v%d, 0" % (vS + r_))
        e("v_mov_b32 v%d, 0" % (vM + r_))
    e("s_nop 7")

    def set_exec(t):
        e("s_cmp_gt_u32 s%d, %d" % (sBB, t))
        e("s_cselect_b64 exec, s[%d:%d], s[%d:%d]" % (sMP, sMP + 1, sMF, sMF + 1))

    def dpp_reduce(base, n):
        for sh in (8, 4, 2, 1):
            for i in range(n):
                e("v_add_f32_dpp v%d, v%d, v%d row_ror:%d row_mask:0xf bank_mask:0xf" % (base + i, base + i, base + i, sh))
            if n < 3:
                e("s_nop 1")

    for t in range(16):
        set_exec(t)
        for r_ in range(4):
            e("v_add_f32 v%d, v%d, v%d" % (vS + r_, vS + r_, ACC + 4 * t + r_))
    e("s_mov_b64 exec, -1")
    e("s_nop 1")
    dpp_reduce(vS, 4)
    for r_ in range(4):
        e("v_mul_f32 v%d, s%d, v%d" % (vS + r_, sRN, vS + r_))
    for t in range(16):
        set_exec(t)
        for r_ in range(4):
            e("v_sub_f32 v%d, v%d, v%d" % (vT + r_, ACC + 4 * t + r_, vS + r_))
        for r_ in range(4):
            e("v_fmac_f32 v%d, v%d, v%d" % (vM + r_, vT + r_, vT + r_))
    e("s_mov_b64 exec, -1")
    e("s_nop 1")
    dpp_reduce(vM, 4)
    e("s_lshl_b32 s%d, s%d, 2" % (sGRP, sB))
    e("s_add_u32 s%d, s%d, s%d" % (sGRP, sGRP, sNT))
    e("s_lshl_b32 s%d, s%d, 14" % (sT0, sGRP))
    e("s_lshl_b32 s%d, s%d, 6" % (sT1, sWAVE))
    e("s_add_u32 s%d, s%d, s%d" % (sT0, sT0, sT1))
    e("s_lshl_b32 s%d, s%d, 9" % (sT1, sMT))
    e("s_add_u32 s%d, s%d, s%d" % (sT1, sT1, sT0))
    e("v_lshlrev_b32 v12, 4, v%d" % vG)
    e("v_cmp_eq_u32 vcc, 0, v%d" % vR)
    e("s_and_saveexec_b64 s[%d:%d], vcc" % (sC0, sC0 + 1))
    e("buffer_store_dwordx4 v[%d:%d], v12, s[%d:%d], s%d offen sc1" % (vS, vS + 3, SP, SP + 3, sT1))
    e("buffer_store_dwordx4 v[%d:%d], v12, s[%d:%d], s%d offen offset:256 sc1" % (vM, vM + 3, SP, SP + 3, sT1))
    e("s_mov_b64 exec, -1")
    e("s_waitcnt vmcnt(0)")
    e("s_barrier")
    e("s_cmp_lg_u32 s%d, 0" % sWAVE)
    e("s_cbranch_scc1 L_wait_done")
    e("s_lshl_b32 s%d, s%d, 5" % (sT2, sGRP))
    e("v_mov_b32 v13, s%d" % sT2)
    e("v_mov_b32 v14, 1")
    e("s_mov_b64 exec, 1")
    e("global_atomic_add v13, v14, s[14:15]")
    e("s_mov_b32 s%d, 0" % sCNT)
    e.label("L_poll")
    e("global_load_dword v15, v13, s[14:15] sc1")
    e("s_add_u32 s%d, s%d, 1" % (sCNT, sCNT))
    e("s_waitcnt vmcnt(0)")
    e("v_readfirstlane_b32 s%d, v15" % sT2)
    e("s_cmp_ge_u32 s%d, 0x400000" % sCNT)
    e("s_cbranch_scc1 L_poll_done")
    e("s_cmp_lt_u32 s%d, 32" % sT2)
    e("s_cbranch_scc1 L_poll")
    e.label("L_poll_done")
    e("s_mov_b64 exec, -1")
    e.label("L_wait_done")
    e("s_barrier")
    vP = 32
    e("v_lshlrev_b32 v13, 9, v%d" % vR)
    e("v_add_u32 v13, v13, v12")
    e("v_add_u32 v14, 8192, v13")
    e("buffer_load_dwordx4 v[%d:%d], v13, s[%d:%d], s%d offen sc1" % (vP, vP + 3, SP, SP + 3, sT0))
    e("buffer_load_dwordx4 v[%d:%d], v13, s[%d:%d], s%d offen offset:256 sc1" % (vP + 4, vP + 7, SP, SP + 3, sT0))
    e("buffer_load_dwordx4 v[%d:%d], v14, s[%d:%d], s%d offen sc1" % (vP + 8, vP + 11, SP, SP + 3, sT0))
    e("buffer_load_dwordx4 v[%d:%d], v14, s[%d:%d], s%d offen offset:256 sc1" % (vP + 12, vP + 15, SP, SP + 3, sT0))
    vN1 = 15
    e("v_mov_b32 v%d, 0x%08x" % (vN1, f32(256.0)))
    e("v_mov_b32 v13, 0x%08x" % f32(float(LAST_VALID)))
    e("v_cmp_eq_u32 vcc, 15, v%d" % vR)
    vGF, vBF = 48, 52
    e("v_lshlrev_b32 v%d, 16, v%d" % (vGF + 0, vGAM))
    e("v_and_b32 v%d, 0xffff0000, v%d" % (vGF + 1, vGAM))
    e("v_cndmask_b32 v%d, v%d, v13, vcc" % (vN1, vN1))
    e("v_lshlrev_b32 v%d, 16, v%d" % (vGF + 2, vGAM + 1))
    e("v_and_b32 v%d, 0xffff0000, v%d" % (vGF + 3, vGAM + 1))
    e("v_lshlrev_b32 v%d, 16, v%d" % (vBF + 0, vBET))
    e("v_and_b32 v%d, 0xffff0000, v%d" % (vBF + 1, vBET))
    e("v_lshlrev_b32 v%d, 16, v%d" % (vBF + 2, vBET + 1))
    e("v_and_b32 v%d, 0xffff0000, v%d" % (vBF + 3, vBET + 1))
    e("s_mov_b32 s%d, 0x%08x" % (sT1, f32(256.0)))
    e("s_mov_b32 s%d, 0x%08x" % (sT2, f32(1.0 / L)))
    e("s_waitcnt vmcnt(0)")
    for r_ in range(4):
        e("v_mul_f32 v%d, s%d, v%d" % (vS + r_, sT1, vP + r_))
    for r_ in range(4):
        e("v_fmac_f32 v%d, v%d, v%d" % (vS + r_, vN1, vP + 8 + r_))
    e("s_nop 0")
    dpp_reduce(vS, 4)
    for r_ in range(4):
        e("v_mul_f32 v%d, s%d, v%d" % (vS + r_, sT2, vS + r_))
    for r_ in range(4):
        e("v_add_f32 v%d, v%d, v%d" % (vM + r_, vP + 4 + r_, vP + 12 + r_))
    for r_ in range(4):
        e("v_sub_f32 v%d, v%d, v%d" % (vT + r_, vP + r_, vS + r_))
        e("v_sub_f32 v%d, v%d, v%d" % (vT + 4 + r_, vP + 8 + r_, vS + r_))
    for r_ in range(4):
        e("v_mul_f32 v%d, v%d, v%d" % (vT + r_, vT + r_, vT + r_))
        e("v_mul_f32 v%d, v%d, v%d" % (vT + 4 + r_, vT + 4 + r_, vT + 4 + r_))
    for r_ in range(4):
        e("v_fmac_f32 v%d, s%d, v%d" % (vM + r_, sT1, vT + r_))
    for r_ in range(4):
        e("v_fmac_f32 v%d, v%d, v%d" % (vM + r_, vN1, vT + 4 + r_))
    e("s_nop 0")
    dpp_reduce(vM, 4)
    e("v_mov_b32 v13, 0x%08x" % f32(1e-5))
    for r_ in range(4):
        e("v_fma_f32 v%d, v%d, s%d, v13" % (vM + r_, vM + r_, sT2))
    for r_ in range(4):
        e("v_rsq_f32 v%d, v%d" % (vM + r_, vM + r_))
    e("s_nop 0")
    vCA, vCB = 56, 60
    for r_ in range(4):
        e("v_mul_f32 v%d, v%d, v%d" % (vCA + r_, vM + r_, vGF + r_))
    for r_ in range(4):
        e("v_fma_f32 v%d, -v%d, v%d, v%d" % (vCB + r_, vS + r_, vCA + r_, vBF + r_))
    e("s_mul_i32 s%d, s%d, %d" % (sOB, sB, L * 512))
    e("s_lshl_b32 s%d, s%d, 17" % (sT1, sMT))
    e("s_add_u32 s%d, s%d, s%d" % (sOB, sOB, sT1))
    e("s_add_u32 s%d, s%d, s%d" % (sOB, sOB, sN2))
    e("s_lshl_b32 s%d, s%d, 5" % (sT1, sWAVE))
    e("s_add_u32 s%d, s%d, s%d" % (sOB, sOB, sT1))
    e("s_add_u32 s%d, s%d, 4096" % (sT1, sOB))
    e("v_lshlrev_b32 v12, 13, v%d" % vR)
    e("v_lshlrev_b32 v13, 3, v%d" % vG)
    e("v_add_u32 v12, v12, v13")
    import math
    c0 = -2.0 * math.log2(math.e) * math.sqrt(2.0 / math.pi)
    c1 = c0 * 0.044715
    e("s_mov_b32 s%d, 0x%08x" % (sC0, f32(c0)))
    e("s_mov_b32 s%d, 0x%08x" % (sC1, f32(c1)))
    e("v_mov_b32 v14, s%d" % sC0)
    for t in range(16):
        a = ACC + 4 * t
        y = WIN + 16 * (t % 4)
        z = y + 4
        o = y + 8
        if DEBUG_H:
            for r_ in range(4):
                e("v_mov_b32 v%d, v%d" % (y + r_, a + r_))
        else:
            for r_ in range(4):
                e("v_fma_f32 v%d, v%d, v%d, v%d" % (y + r_, a + r_, vCA + r_, vCB + r_))
            for r_ in range(4):
                e("v_mul_f32 v%d, v%d, v%d" % (z + r_, y + r_, y + r_))
            for r_ in range(4):
                e("v_fma_f32 v%d, v%d, s%d, v14" % (z + r_, z + r_, sC1))
            for r_ in range(4):
                e("v_mul_f32 v%d, v%d, v%d" % (z + r_, z + r_, y + r_))
            for r_ in range(4):
                e("v_exp_f32 v%d, v%d" % (z + r_, z + r_))
            for r_ in range(4):
                e("v_add_f32 v%d, 1.0, v%d" % (z + r_, z + r_))
            for r_ in range(4):
                e("v_rcp_f32 v%d, v%d" % (z + r_, z + r_))
            for r_ in range(4):
                e("v_mul_f32 v%d, v%d, v%d" % (y + r_, y + r_, z + r_))
        e("v_cvt_pk_bf16_f32 v%d, v%d, v%d" % (o, y, y + 1))
        e("v_cvt_pk_bf16_f32 v%d, v%d, v%d" % (o + 1, y + 2, y + 3))
        set_exec(t)
        sb = sOB if t < 8 else sT1
        e("buffer_store_dwordx2 v[%d:%d], v12, s[%d:%d], s%d offen offset:%d" % (o, o + 1, SO, SO + 3, sb, (t % 8) * 512))
        e("s_mov_b64 exec, -1")
    e("s_endpgm")

    e.label("L_loader")
    vLW, vXA, vXB = 1, 2, 3
    e("s_sub_u32 s%d, s%d, 4" % (sWAVE, sWAVE))
    e("v_lshrrev_b32 v4, 3, v0")
    e("v_lshrrev_b32 v5, 1, v0")
    e("v_and_b32 v5, 3, v5")
    e("v_and_b32 v6, 1, v0")
    e("v_lshrrev_b32 v7, 1, v4")
    e("v_and_b32 v7, 1, v7")
    e("s_and_b32 s%d, s%d, 1" % (sT0, sWAVE))
    e("s_lshl_b32 s%d, s%d, 1" % (sT0, sT0))
    e("v_or_b32 v7, s%d, v7" % sT0)
    e("v_xor_b32 v5, v5, v7")
    e("v_lshlrev_b32 v4, 9, v4")
    e("v_lshlrev_b32 v5, 5, v5")
    e("v_lshlrev_b32 v6, 4, v6")
    e("v_add3_u32 v4, v4, v5, v6")
    e("s_lshl_b32 s%d, s%d, 12" % (sT0, sWAVE))
    e("v_add_u32 v%d, s%d, v4" % (vLW, sT0))
    e("v_lshrrev_b32 v4, 2, v0")
    e("v_lshlrev_b32 v4, 10, v4")
    e("v_and_b32 v5, 3, v0")
    e("v_xor_b32 v6, 2, v5")
    e("v_lshlrev_b32 v5, 4, v5")
    e("v_lshlrev_b32 v6, 4, v6")
    e("v_add_u32 v%d, v4, v5" % vXA)
    e("v_add_u32 v%d, v4, v6" % vXB)
    e("s_lshl_b32 s%d, s%d, 10" % (sM0W, sWAVE))
    e("s_add_u32 s%d, s%d, %d" % (sM0W, sM0W, WBASE))
    e("s_mul_i32 s%d, s%d, %d" % (sM0X, sWAVE, XSEG))
    e("s_mov_b32 s%d, s%d" % (sWC, sN2))
    e("s_lshl_b32 s%d, s%d, 14" % (sT0, sWAVE))
    e("s_add_u32 s%d, s%d, s%d" % (sXC, sXB, sT0))
    e("s_add_u32 s%d, s%d, %d" % (sXC16, sXB, 16 * 16384))
    e("s_mov_b32 s%d, 0" % sCC)

    def issues_after_barrier(S):
        cc, st = divmod(S, 8)
        out = []
        if st == 0:
            out.append(("X", 2 * cc + 1))
            out.append(("W", 8 * cc + 7))
        else:
            if st == 4 and 2 * cc + 2 <= 15:
                out.append(("X", 2 * cc + 2))
            if 8 * (cc + 1) + st - 1 <= 63:
                out.append(("W", 8 * (cc + 1) + st - 1))
        return out

    def gsize(g):
        return 5 if g[0] == "X" else len(STAGES[g[1] % 8])

    seq = [("X", 0)] + [("W", s) for s in range(7)]

    def wait_count(seq, need):
        idx = -1
        for i, g in enumerate(seq):
            if g in need:
                idx = i
        assert idx >= 0 or not need
        return sum(gsize(g) for g in seq[idx + 1:])

    def needs(S):
        n = []
        if S + 1 <= 63:
            n.append(("W", S + 1))
            n.append(("X", (S + 1) // 4))
        return n

    waits = {}
    waits[-1] = wait_count(seq, needs(-1))
    for S in range(64):
        nd = needs(S)
        for g in nd:
            assert g in seq, (S, g)
        waits[S] = wait_count(seq, nd) if nd else 0
        seq += issues_after_barrier(S)
    steady = [min(waits[8 * cc + st] for cc in range(7)) for st in range(8)]
    final = [waits[56 + st] for st in range(8)]
    for v in steady + final + [waits[-1]]:
        assert v <= 63

    def dma_w(ccrel, stg):
        for sig in STAGES[stg]:
            e("s_add_u32 m0, s%d, %d" % (sM0W, sig * WSTEP))
            e("s_add_u32 s%d, s%d, %d" % (sT0, sWC, ccrel * 16384 + tap_of(sig) * 131072))
            e("buffer_load_dwordx4 v%d, s[%d:%d], s%d offen lds" % (vLW, SW, SW + 3, sT0))

    def dma_x(ccrel, p):
        for m in range(4):
            e("s_add_u32 m0, s%d, %d" % (sM0X, p * XBUF + m * 4 * XSEG))
            e("s_add_u32 s%d, s%d, %d" % (sT0, sXC, m * 65536 + p * 512 + ccrel * 64))
            e("buffer_load_dwordx4 v%d, s[%d:%d], s%d offen lds" % (vXB if (m & 1) else vXA, SX, SX + 3, sT0))
        e("s_mov_b32 m0, %d" % (p * XBUF + 16 * XSEG))
        e("s_add_u32 s%d, s%d, %d" % (sT0, sXC16, p * 512 + ccrel * 64))
        e("buffer_load_dwordx4 v%d, s[%d:%d], s%d offen lds" % (vXA, SX, SX + 3, sT0))

    e.c("loader prologue")
    dma_x(0, 0)
    for stg in range(7):
        dma_w(0, stg)
    e("s_waitcnt vmcnt(%d)" % waits[-1])
    e("s_barrier")
    e.label("L_lloop")
    for st in range(8):
        e("s_waitcnt vmcnt(%d)" % steady[st])
        e("s_barrier")
        if st == 0:
            dma_x(0, 1)
            dma_w(0, 7)
        else:
            if st == 4:
                dma_x(1, 0)
            dma_w(1, st - 1)
    e("s_add_u32 s%d, s%d, 16384" % (sWC, sWC))
    e("s_add_u32 s%d, s%d, 64" % (sXC, sXC))
    e("s_add_u32 s%d, s%d, 64" % (sXC16, sXC16))
    e("s_add_u32 s%d, s%d, 1" % (sCC, sCC))
    e("s_cmp_lt_u32 s%d, 7" % sCC)
    e("s_cbranch_scc1 L_lloop")
    e.c("loader final chunk")
    for st in range(8):
        e("s_waitcnt vmcnt(%d)" % final[st])
        e("s_barrier")
        if st == 0:
            dma_x(0, 1)
            dma_w(0, 7)
    e.label("L_end")
    e("s_endpgm")

    hdr = """; Kernarg layout for this problem (56 bytes, ptrs only, base s[0:1]):
;   offset   0: d_in[0] x  shape=(2, 16000, 256) dtype=bfloat16
;   offset   8: d_in[1] w  shape=(31, 256, 256) dtype=bfloat16
;   offset  16: d_in[2] gn_gamma  shape=(256,) dtype=bfloat16
;   offset  24: d_in[3] gn_beta  shape=(256,) dtype=bfloat16
;   offset  32: d_out     shape=(2, 7985, 256) dtype=bfloat16
;   offset  40: d_debug   256 bytes
;   offset  48: d_ws      workspace
; Generated by work/gen.py (implicit-GEMM conv + fused group norm + GELU, one WG per CU)
; @launch grid=(256,1,1) block=(512,1,1) lds=%d
.amdgcn_target "amdgcn-amd-amdhsa--gfx950"
.text
.globl %s_kernel
.p2align 8
.type %s_kernel,@function
%s_kernel:
""" % (LDS_TOTAL, NAME, NAME, NAME)
    ftr = """.section .rodata,"a"
.p2align 6
.amdhsa_kernel %s_kernel
  .amdhsa_next_free_vgpr 208
  .amdhsa_next_free_sgpr 96
  .amdhsa_accum_offset 208
  .amdhsa_group_segment_fixed_size 0
  .amdhsa_kernarg_size 56
  .amdhsa_user_sgpr_count 2
  .amdhsa_user_sgpr_kernarg_segment_ptr 1
  .amdhsa_system_sgpr_workgroup_id_x 1
.end_amdhsa_kernel
""" % NAME
    return hdr + e.text() + ftr


if __name__ == "__main__":
    opts = {}
    out = "cdna_kernels/%s.s" % NAME
    for a in sys.argv[1:]:
        if a.startswith("-o"):
            out = a[2:]
        elif "=" in a:
            k, v = a.split("=")
            opts[k] = int(v)
        else:
            opts[a] = True
    open(out, "w").write(gen(opts))
    print("wrote", out)
```

```python
import sys
import struct
import math

NAME = "standalone__self_sup_conv_stem_wavlm__speech"

B_, T, D, KT = 2, 16000, 256, 31
L = 7985
X_BYTES = B_ * T * D * 2
W_BYTES = KT * D * D * 2
OUT_BYTES = B_ * L * D * 2
TROWS = 255
LAST_VALID = L - 31 * TROWS

XBLK = 1088
SEQ = 8 * XBLK + 7 * 64
WBASE = 4 * SEQ
WSTEP = 4096
LDS_TOTAL = 163840
assert WBASE + 31 * WSTEP <= LDS_TOTAL


def wslot_addr(n):
    return WBASE + n * WSTEP if n < 31 else 3 * SEQ


PART_BYTES = 8 * 16384
GS_OFF = 1 << 20
GS_BYTES = 16 * 131072
S_OFF = 4 << 20
S_CC = 144 * 64
S_P = 8 * S_CC
S_GM = 2 * S_P
S_BYTES = 64 * S_GM
STAMP_OFF = 16 << 20


def f32(x):
    return struct.unpack("<I", struct.pack("<f", x))[0]


class Emit:
    def __init__(self):
        self.lines = []

    def __call__(self, s):
        self.lines.append("    " + s)

    def label(self, s):
        self.lines.append(s + ":")

    def c(self, s):
        self.lines.append("    ; " + s)

    def text(self):
        return "\n".join(self.lines) + "\n"


def gen(opts):
    e = Emit()
    DEBUG_H = opts.get("debug_h", False)
    STAMP = opts.get("stamp", False)

    SX, SW, SO, SP, SG = 20, 24, 28, 32, 36
    SS = 28
    sWAVE, sNT, sGM, sB, sMT, sXB, sN2 = 40, 41, 42, 43, 44, 45, 46
    sT0, sT1, sT2 = 47, 48, 49
    sCC = 50
    sM0W, sWC, sXC, sSQ, sX2 = 51, 52, 53, 54, 55
    sXM = 56
    sMF, sMP = 58, 60
    sA, sBB, sNV = 62, 63, 64
    sGRP, sOB, sCNT, sRN = 65, 66, 67, 68
    sPB = 69
    sC0, sC1 = 70, 72
    sST = 74
    nstamp = [0]

    def stamp():
        if not STAMP:
            return
        i = nstamp[0]
        nstamp[0] += 1
        assert i < 10
        e("s_memtime s[94:95]")
        e("s_memrealtime s[96:97]")
        e("s_waitcnt lgkmcnt(0)")
        e("s_mov_b32 s%d, s94" % (sST + 2 * i))
        e("s_mov_b32 s%d, s96" % (sST + 2 * i + 1))

    e.c("entry")
    e("s_cmp_ge_u32 s2, 256")
    e("s_cbranch_scc1 L_end")
    e("s_load_dwordx8 s[4:11], s[0:1], 0")
    e("s_load_dwordx4 s[12:15], s[0:1], 32")
    e("s_load_dwordx2 s[16:17], s[0:1], 48")
    e("v_lshrrev_b32 v1, 6, v0")
    e("v_mov_b32 v19, v0")
    e("v_and_b32 v0, 63, v0")
    e("s_and_b32 s%d, s2, 7" % sT0)
    e("v_readfirstlane_b32 s%d, v1" % sWAVE)
    e("s_lshr_b32 s%d, s2, 3" % sT1)
    e("s_and_b32 s%d, s%d, 3" % (sNT, sT1))
    e("s_lshr_b32 s%d, s%d, 2" % (sT1, sT1))
    e("s_lshl_b32 s%d, s%d, 3" % (sGM, sT0))
    e("s_add_u32 s%d, s%d, s%d" % (sGM, sGM, sT1))
    e("s_lshr_b32 s%d, s%d, 5" % (sB, sGM))
    e("s_and_b32 s%d, s%d, 31" % (sMT, sGM))
    e("s_mul_i32 s%d, s%d, %d" % (sXB, sB, T * 512))
    e("s_mul_i32 s%d, s%d, %d" % (sT0, sMT, 2 * TROWS * 512))
    e("s_add_u32 s%d, s%d, s%d" % (sXB, sXB, sT0))
    e("s_lshl_b32 s%d, s%d, 7" % (sN2, sNT))
    e("s_waitcnt lgkmcnt(0)")
    for (srd, p, nbytes) in ((SX, 4, X_BYTES), (SW, 6, W_BYTES), (SO, 12, OUT_BYTES), (SP, 16, PART_BYTES)):
        e("s_mov_b32 s%d, s%d" % (srd, p))
        e("s_and_b32 s%d, s%d, 0xffff" % (srd + 1, p + 1))
        e("s_mov_b32 s%d, %d" % (srd + 2, nbytes))
        e("s_mov_b32 s%d, 0x00020000" % (srd + 3))
    e("s_add_u32 s%d, s16, %d" % (SG, GS_OFF))
    e("s_addc_u32 s%d, s17, 0" % (SG + 1))
    e("s_and_b32 s%d, s%d, 0xffff" % (SG + 1, SG + 1))
    e("s_mov_b32 s%d, %d" % (SG + 2, GS_BYTES))
    e("s_mov_b32 s%d, 0x00020000" % (SG + 3))
    e("s_cmp_ge_u32 s%d, 4" % sWAVE)
    e("s_cbranch_scc1 L_loader")

    vX = [1, 2]
    vXD = [[3, 4], [5, 6]]
    vW = [7, 8, 9]
    vR, vG = 10, 11
    vGAM, vBET = 12, 14
    vPO = 16
    ACCB, ACCC, ACCA = 20, 52, 84
    WIN = 116
    WF = [176, 180, 184, 188]
    e.c("consumer setup")
    stamp()
    e("s_setprio %d" % opts.get("cprio", 2))
    e("s_lshr_b32 s%d, s2, 4" % sT0)
    e("s_lshr_b32 s%d, s%d, 3" % (sT1, sT0))
    e("s_and_b32 s%d, s%d, 7" % (sT2, sT0))
    e("s_lshl_b32 s%d, s%d, 2" % (sT2, sT2))
    e("s_add_u32 s%d, s%d, s%d" % (sT2, sT2, sT1))
    e("s_lshl_b32 s%d, s%d, 17" % (sT2, sT2))
    e("s_and_b32 s%d, s2, 15" % sT1)
    e("s_lshl_b32 s%d, s%d, 13" % (sT1, sT1))
    e("s_add_u32 s%d, s%d, s%d" % (sT2, sT2, sT1))
    e("s_lshl_b32 s%d, s%d, 17" % (sT0, sT0))
    e("s_add_u32 s%d, s%d, s%d" % (sT0, sT0, sT1))
    e("s_add_u32 s%d, s%d, %d" % (sT1, sT2, 2 * 131072))
    e("v_lshlrev_b32 v18, 5, v19")
    g0, g1, gu = ACCA, ACCA + 8, ACCA + 16
    e("buffer_load_dwordx4 v[%d:%d], v18, s[%d:%d], s%d offen" % (g0, g0 + 3, SW, SW + 3, sT2))
    e("buffer_load_dwordx4 v[%d:%d], v18, s[%d:%d], s%d offen offset:16" % (g0 + 4, g0 + 7, SW, SW + 3, sT2))
    e("buffer_load_dwordx4 v[%d:%d], v18, s[%d:%d], s%d offen" % (g1, g1 + 3, SW, SW + 3, sT1))
    e("buffer_load_dwordx4 v[%d:%d], v18, s[%d:%d], s%d offen offset:16" % (g1 + 4, g1 + 7, SW, SW + 3, sT1))
    e("v_and_b32 v%d, 15, v0" % vR)
    e("v_lshrrev_b32 v%d, 4, v0" % vG)
    e("s_lshl_b32 s%d, s%d, 5" % (sT2, sWAVE))
    e("s_add_u32 s%d, s%d, s%d" % (sT2, sT2, sN2))
    e("v_lshlrev_b32 v17, 3, v%d" % vG)
    e("v_add_u32 v17, s%d, v17" % sT2)
    e("global_load_dwordx2 v[%d:%d], v17, s[8:9]" % (vGAM, vGAM + 1))
    e("global_load_dwordx2 v[%d:%d], v17, s[10:11]" % (vBET, vBET + 1))
    e("s_lshl_b32 s%d, s%d, 2" % (sGRP, sB))
    e("s_add_u32 s%d, s%d, s%d" % (sGRP, sGRP, sNT))
    e("s_lshl_b32 s%d, s%d, 14" % (sPB, sGRP))
    e("s_lshl_b32 s%d, s%d, 6" % (sT1, sWAVE))
    e("s_add_u32 s%d, s%d, s%d" % (sPB, sPB, sT1))
    e("s_lshl_b32 s%d, s%d, 9" % (sT1, sMT))
    e("s_add_u32 s%d, s%d, s%d" % (sT1, sT1, sPB))
    e("v_lshlrev_b32 v%d, 4, v%d" % (vPO, vG))
    for i in range(64):
        e("v_mov_b32 v%d, 0" % (ACCB + i))
    e("v_cmp_eq_u32 vcc, 0, v%d" % vR)
    e("s_and_saveexec_b64 s[%d:%d], vcc" % (sC0, sC0 + 1))
    e("buffer_store_dwordx4 v[%d:%d], v%d, s[%d:%d], s%d offen sc1" % (ACCB, ACCB + 3, vPO, SP, SP + 3, sT1))
    e("buffer_store_dwordx4 v[%d:%d], v%d, s[%d:%d], s%d offen offset:256 sc1" % (ACCB, ACCB + 3, vPO, SP, SP + 3, sT1))
    e("s_mov_b64 exec, -1")
    for ee in (0, 1):
        if ee == 0:
            e("v_mov_b32 v17, v%d" % vR)
        else:
            e("v_add_u32 v17, 1, v%d" % vR)
        e("v_and_b32 v3, 1, v17")
        e("v_lshrrev_b32 v17, 1, v17")
        e("v_mul_u32_u24 v17, %d, v17" % XBLK)
        e("v_lshlrev_b32 v4, 9, v3")
        e("v_add_u32 v17, v17, v4")
        e("v_lshlrev_b32 v3, 1, v3")
        e("v_xor_b32 v3, v3, v%d" % vG)
        e("v_lshlrev_b32 v3, 4, v3")
        e("v_add_u32 v%d, v17, v3" % vX[ee])
    e("v_lshrrev_b32 v3, 2, v%d" % vR)
    e("v_and_b32 v4, 3, v0")
    e("v_lshrrev_b32 v5, 1, v3")
    e("v_and_b32 v6, 1, v%d" % vG)
    e("v_lshlrev_b32 v6, 1, v6")
    e("v_or_b32 v5, v5, v6")
    e("v_xor_b32 v5, s%d, v5" % sWAVE)
    e("v_lshlrev_b32 v5, 5, v5")
    e("v_lshlrev_b32 v4, 3, v4")
    e("v_add_u32 v5, v5, v4")
    e("v_lshlrev_b32 v3, 7, v3")
    e("v_add_u32 v5, v5, v3")
    e("v_lshlrev_b32 v3, 10, v%d" % vG)
    e("v_add_u32 v%d, v5, v3" % vW[0])
    e("v_add_u32 v%d, 0x10000, v%d" % (vW[1], vW[0]))
    e("v_add_u32 v%d, 0x20000, v%d" % (vW[2], vW[0]))
    e("v_mov_b32 v%d, v%d" % (vXD[0][0], vX[0]))
    e("v_mov_b32 v%d, v%d" % (vXD[0][1], vX[1]))
    e("s_mov_b32 s%d, 0" % sCC)
    e("s_mov_b32 s%d, 0" % sSQ)
    e("s_mov_b32 s%d, s%d" % (sOB, sT0))
    e("s_lshl_b32 s%d, s%d, 2" % (sT1, sNT))
    e("s_add_u32 s%d, s%d, s%d" % (sT1, sT1, sWAVE))
    e("s_lshl_b32 s%d, s%d, 9" % (sT1, sT1))
    e("s_add_u32 s%d, s%d, s%d" % (sXC, sXB, sT1))
    e("v_min_u32 v19, 33, v0")
    e("v_lshlrev_b32 v19, 13, v19")

    def touch(line):
        if opts.get("notouch"):
            return
        e("buffer_load_dword v194, v19, s[%d:%d], s%d offen offset:%d" % (SX, SX + 3, sXC, 128 * line))

    touch(0)

    class Q:
        def __init__(self):
            self.q = []

        def issue(self, tag):
            self.q.append(tag)

        def need(self, tags):
            idx = -1
            for i, t in enumerate(self.q):
                if t in tags:
                    idx = i
            if idx < 0:
                return
            n = min(len(self.q) - 1 - idx, 15)
            e("s_waitcnt lgkmcnt(%d)" % n)
            self.q = self.q[len(self.q) - n:] if n > 0 else []

        def drain(self):
            e("s_waitcnt lgkmcnt(0)")
            self.q = []

    q = Q()

    def rd_w(slot, buf, half):
        a = wslot_addr(slot) + half * 512
        r = WF[buf] + 2 * half
        e("ds_read_b64_tr_b16 v[%d:%d], v%d offset:%d" % (r, r + 1, vW[a >> 16], a & 0xffff))
        q.issue(("w", buf, half))

    def rd_x(st, u):
        ee, up = u >> 3, u & 7
        r = WIN + 4 * u
        if st["dyn"] is None:
            e("ds_read_b128 v[%d:%d], v%d offset:%d" % (r, r + 3, vX[ee], st["seq"] * SEQ + up * 64))
        else:
            e("ds_read_b128 v[%d:%d], v%d offset:%d" % (r, r + 3, vXD[st["dyn"]][ee], up * 64))
        q.issue(("x", u))

    def mfma(acc, t, buf, u):
        q.need({("w", buf, 0), ("w", buf, 1), ("x", u)})
        a = acc + 4 * t
        w = WF[buf]
        x = WIN + 4 * u
        e("v_mfma_f32_16x16x32_bf16 v[%d:%d], v[%d:%d], v[%d:%d], v[%d:%d]" % (a, a + 3, w, w + 3, x, x + 3, a, a + 3))

    def groups_of(st):
        return [(0, 1), (2, 3), (4, 5), (6, 7)] if st["n"] == 8 else [(0,), (1, 2), (3, 4), (5, 6)]

    def wreads(st, k):
        out = []
        for j, tap in enumerate(groups_of(st)[k]):
            for h in (0, 1):
                out.append(("w", st["slots"][tap], 2 * (k & 1) + j, h))
        return out

    def do_read(st, rd):
        if rd[0] == "w":
            rd_w(rd[1], rd[2], rd[3])
        else:
            rd_x(st, rd[1])

    def next_prefetch(cur, nxt):
        a = groups_of(cur)[3][0]
        ws = wreads(nxt, 0)
        xs = []
        for m in range(9):
            pos = -1 if m < a else 2 * (m - a)
            xs.append((pos, ("x", m)))
        seq = [(-1, ws[0]), (-1, ws[1]), xs[0], xs[1]] + [(-1, r) for r in ws[2:]] + xs[2:]
        return seq

    def stage(cur, nxt, pre_last=None, with_mfma=True, only_last=False):
        gs = groups_of(cur)
        loaded = 9
        for k in range(4):
            if only_last and k < 3:
                continue
            taps = gs[k]
            seqm = [(t, tap) for t in range(8) for tap in taps]
            if k < 3:
                nt = gs[k + 1]
                hi = nt[-1] + 7
                pend = [(-1, cur, r) for r in wreads(cur, k + 1)]
                pend += [(-1, cur, ("x", u)) for u in range(loaded, hi + 1)]
                loaded = max(loaded, hi + 1)
            else:
                if pre_last is not None:
                    pre_last()
                q.drain()
                e("s_barrier")
                pend = [(pos, nxt, r) for (pos, r) in next_prefetch(cur, nxt)]
            for pos, (t, tap) in enumerate(seqm):
                if with_mfma:
                    mfma(cur["acc"], t, 2 * (k & 1) + taps.index(tap), t + tap)
                for j, (ep, st, r) in enumerate(pend):
                    if ep <= pos:
                        do_read(st, r)
                        pend.pop(j)
                        break
            for (ep, st, r) in pend:
                do_read(st, r)

    P1 = []
    slot = 0
    for j in range(4):
        n = 7 if j == 3 else 8
        P1.append(dict(acc=(ACCB, ACCC, ACCB, ACCC)[j], seq=j, dyn=None, n=n, slots=list(range(slot, slot + n))))
        slot += n
    P2 = []
    for j in range(4):
        P2.append(dict(acc=ACCA, seq=None, dyn=j & 1, n=8, slots=list(range(8 * j, 8 * j + 8))))

    def itstamp(base):
        if not opts.get("itstamp"):
            return
        e("s_memtime s[94:95]")
        e("s_lshl_b32 s96, s2, 2")
        e("s_add_u32 s96, s96, s%d" % sWAVE)
        e("s_lshl_b32 s96, s96, 7")
        e("s_add_u32 s96, s96, 0x%x" % (STAMP_OFF + (2 << 20) + 4 * base))
        e("s_lshl_b32 s97, s%d, 2" % sCC)
        e("s_add_u32 s96, s96, s97")
        e("s_waitcnt lgkmcnt(0)")
        e("v_mov_b32 v192, s96")
        e("v_mov_b32 v193, s94")
        e("global_store_dword v192, v193, s[16:17]")

    e.c("first barrier + initial reads")
    stage(P1[3], P1[0], with_mfma=False, only_last=True)
    stamp()
    itstamp(0)
    touch(1)
    e.label("L_p1")
    for j in range(4):
        e.c("pass1 stage %d" % j)
        stage(P1[j], P1[(j + 1) % 4])
    e("s_cmp_lg_u32 s%d, %d" % (sCC, opts.get('s0', 1) + 2))
    e("s_cbranch_scc1 L_nodr")
    e("s_waitcnt vmcnt(0)")
    e.label("L_nodr")
    e("s_cmp_lg_u32 s%d, 0" % sCC)
    e("s_cbranch_scc1 L_nogs")
    e("s_waitcnt vmcnt(%d)" % (4 if (opts.get("notouch") or opts.get("itstamp")) else 6))
    for k in range(8):
        u = gu + 4 * (k % 2)
        e("v_lshlrev_b32 v%d, 16, v%d" % (u, g0 + k))
        e("v_and_b32 v%d, 0xffff0000, v%d" % (u + 1, g0 + k))
        e("v_lshlrev_b32 v%d, 16, v%d" % (u + 2, g1 + k))
        e("v_and_b32 v%d, 0xffff0000, v%d" % (u + 3, g1 + k))
        e("v_pk_add_f32 v[%d:%d], v[%d:%d], v[%d:%d]" % (u, u + 1, u, u + 1, u + 2, u + 3))
        e("v_cvt_pk_bf16_f32 v%d, v%d, v%d" % (g0 + k, u, u + 1))
    e("buffer_store_dwordx4 v[%d:%d], v18, s[%d:%d], s%d offen sc1" % (g0, g0 + 3, SG, SG + 3, sOB))
    e("buffer_store_dwordx4 v[%d:%d], v18, s[%d:%d], s%d offen offset:16 sc1" % (g0 + 4, g0 + 7, SG, SG + 3, sOB))

    touch(2)
    e.label("L_nogs")
    e("s_cmp_lg_u32 s%d, %d" % (sCC, opts.get("t3", 2)))
    e("s_cbranch_scc1 L_not3")
    touch(3)
    e.label("L_not3")
    itstamp(1)
    e("s_add_u32 s%d, s%d, 1" % (sCC, sCC))
    e("s_cmp_lt_u32 s%d, 8" % sCC)
    e("s_cbranch_scc1 L_p1")
    for i in range(32):
        e("v_mov_b32 v%d, 0" % (ACCA + i))
    stamp()
    e("s_mov_b32 s%d, 0" % sCC)
    e.label("L_p2")
    for j in range(4):
        e.c("pass2 stage %d" % j)

        def pre(j=j):
            e("s_add_u32 s%d, s%d, %d" % (sSQ, sSQ, SEQ))
            e("s_cmp_ge_u32 s%d, %d" % (sSQ, 3 * SEQ))
            e("s_cselect_b32 s%d, 0, s%d" % (sSQ, sSQ))
            s = vXD[(j + 1) & 1]
            e("v_add_u32 v%d, s%d, v%d" % (s[0], sSQ, vX[0]))
            e("v_add_u32 v%d, s%d, v%d" % (s[1], sSQ, vX[1]))
        stage(P2[j], P2[(j + 1) % 4], pre_last=pre)
    itstamp(9)
    e("s_add_u32 s%d, s%d, 1" % (sCC, sCC))
    e("s_cmp_lt_u32 s%d, 4" % sCC)
    e("s_cbranch_scc1 L_p2")

    e.c("epilogue")
    e("s_waitcnt lgkmcnt(0) vmcnt(0)")
    stamp()
    e("s_cmp_eq_u32 s%d, 31" % sMT)
    e("s_movk_i32 s%d, %d" % (sNV, TROWS))
    e("s_cselect_b32 s%d, %d, s%d" % (sNV, LAST_VALID, sNV))
    e("s_mov_b32 s%d, 0x%08x" % (sRN, f32(1.0 / TROWS)))
    e("s_cselect_b32 s%d, 0x%08x, s%d" % (sRN, f32(1.0 / LAST_VALID), sRN))
    e("s_lshr_b32 s%d, s%d, 4" % (sA, sNV))
    e("s_and_b32 s%d, s%d, 15" % (sBB, sNV))
    e("v_cmp_gt_u32 s[%d:%d], s%d, v%d" % (sMF, sMF + 1, sA, vR))
    e("v_cmp_ge_u32 s[%d:%d], s%d, v%d" % (sMP, sMP + 1, sA, vR))
    vS = WIN
    vM = WIN + 4
    vPV = WIN + 8
    vT = WIN + 12
    for r_ in range(8):
        e("v_mov_b32 v%d, 0" % (vS + r_))
    e("s_nop 4")

    def H(tp):
        return (ACCB if (tp & 1) == 0 else ACCA) + 4 * (tp >> 1)

    def pk(op, d, a, b, c=None, mods=""):
        s = "%s v[%d:%d], v[%d:%d], v[%d:%d]" % (op, d, d + 1, a, a + 1, b, b + 1)
        if c is not None:
            s += ", v[%d:%d]" % (c, c + 1)
        e(s + mods)

    NEG = " neg_lo:[0,1] neg_hi:[0,1]"
    for r_ in range(4):
        e("v_mov_b32_dpp v%d, v%d row_shl:1 row_mask:0xf bank_mask:0xf bound_ctrl:0" % (vT + r_, ACCB + r_))
    for t in range(8):
        nxt_ = ACCB + 4 * (t + 1) if t < 7 else vT
        for hh in (0, 2):
            pk("v_pk_add_f32", ACCA + 4 * t + hh, ACCA + 4 * t + hh, ACCC + 4 * t + hh, mods=NEG)
        for hh in (0, 2):
            pk("v_pk_add_f32", ACCA + 4 * t + hh, ACCA + 4 * t + hh, nxt_ + hh, mods=NEG)
        for hh in (0, 2):
            pk("v_pk_add_f32", ACCB + 4 * t + hh, ACCB + 4 * t + hh, ACCC + 4 * t + hh)
    for r_ in range(4):
        e("v_mov_b32_dpp v%d, v%d row_newbcast:0 row_mask:0xf bank_mask:0xf" % (vPV + r_, ACCB + r_))

    def set_exec(t):
        e("s_cmp_gt_u32 s%d, %d" % (sBB, t))
        e("s_cselect_b64 exec, s[%d:%d], s[%d:%d]" % (sMP, sMP + 1, sMF, sMF + 1))

    def dpp_reduce(base, n):
        for sh in (8, 4, 2, 1):
            for i in range(n):
                e("v_add_f32_dpp v%d, v%d, v%d row_ror:%d row_mask:0xf bank_mask:0xf" % (base + i, base + i, base + i, sh))

    for tp in range(16):
        set_exec(tp)
        tt = vT + 4 * (tp & 1)
        for hh in (0, 2):
            pk("v_pk_add_f32", tt + hh, H(tp) + hh, vPV + hh, mods=" neg_lo:[0,1] neg_hi:[0,1]")
        for hh in (0, 2):
            pk("v_pk_add_f32", vS + hh, vS + hh, tt + hh)
            pk("v_pk_fma_f32", vM + hh, tt + hh, tt + hh, vM + hh)
    e("s_mov_b64 exec, -1")
    e("s_nop 1")
    dpp_reduce(vS, 8)
    for r_ in range(4):
        e("v_mul_f32 v%d, s%d, v%d" % (vT + r_, sRN, vS + r_))
    for r_ in range(4):
        e("v_fma_f32 v%d, -v%d, v%d, v%d" % (vM + r_, vT + r_, vS + r_, vM + r_))
        e("v_add_f32 v%d, v%d, v%d" % (vS + r_, vPV + r_, vT + r_))
    for r_ in range(4):
        e("v_max_f32 v%d, 0, v%d" % (vM + r_, vM + r_))
    for r_ in range(8):
        e("v_or_b32 v%d, 1, v%d" % (vS + r_, vS + r_))
    e("s_lshl_b32 s%d, s%d, 9" % (sT1, sMT))
    e("s_add_u32 s%d, s%d, s%d" % (sT1, sT1, sPB))
    e("v_cmp_eq_u32 vcc, 0, v%d" % vR)
    e("s_and_saveexec_b64 s[%d:%d], vcc" % (sC0, sC0 + 1))
    e("buffer_store_dwordx4 v[%d:%d], v%d, s[%d:%d], s%d offen sc1" % (vS, vS + 3, vPO, SP, SP + 3, sT1))
    e("buffer_store_dwordx4 v[%d:%d], v%d, s[%d:%d], s%d offen offset:256 sc1" % (vM, vM + 3, vPO, SP, SP + 3, sT1))
    e("s_mov_b64 exec, -1")
    stamp()
    vP = WIN + 20
    vGF, vBF = WIN + 36, WIN + 40
    vN1 = 17
    e("v_lshlrev_b32 v1, 9, v%d" % vR)
    e("v_add_u32 v1, v1, v%d" % vPO)
    e("v_add_u32 v2, 8192, v1")
    e("v_mov_b32 v%d, 0x%08x" % (vN1, f32(float(TROWS))))
    e("v_mov_b32 v3, 0x%08x" % f32(float(LAST_VALID)))
    e("v_cmp_eq_u32 vcc, 15, v%d" % vR)
    e("v_lshlrev_b32 v%d, 16, v%d" % (vGF + 0, vGAM))
    e("v_and_b32 v%d, 0xffff0000, v%d" % (vGF + 1, vGAM))
    e("v_cndmask_b32 v%d, v%d, v3, vcc" % (vN1, vN1))
    e("v_lshlrev_b32 v%d, 16, v%d" % (vGF + 2, vGAM + 1))
    e("v_and_b32 v%d, 0xffff0000, v%d" % (vGF + 3, vGAM + 1))
    e("v_lshlrev_b32 v%d, 16, v%d" % (vBF + 0, vBET))
    e("v_and_b32 v%d, 0xffff0000, v%d" % (vBF + 1, vBET))
    e("v_lshlrev_b32 v%d, 16, v%d" % (vBF + 2, vBET + 1))
    e("v_and_b32 v%d, 0xffff0000, v%d" % (vBF + 3, vBET + 1))
    e("s_mul_i32 s%d, s%d, %d" % (sOB, sB, L * 512))
    e("s_mul_i32 s%d, s%d, %d" % (sT1, sMT, TROWS * 512))
    e("s_add_u32 s%d, s%d, s%d" % (sOB, sOB, sT1))
    e("s_add_u32 s%d, s%d, s%d" % (sOB, sOB, sN2))
    e("s_lshl_b32 s%d, s%d, 5" % (sT1, sWAVE))
    e("s_add_u32 s%d, s%d, s%d" % (sOB, sOB, sT1))
    e("v_lshlrev_b32 v4, 13, v%d" % vR)
    e("v_lshlrev_b32 v3, 3, v%d" % vG)
    e("v_add_u32 v4, v4, v3")
    e("s_mov_b32 s%d, 0" % sCNT)
    e.label("L_poll")
    e("buffer_load_dwordx4 v[%d:%d], v1, s[%d:%d], s%d offen sc1" % (vP, vP + 3, SP, SP + 3, sPB))
    e("buffer_load_dwordx4 v[%d:%d], v1, s[%d:%d], s%d offen offset:256 sc1" % (vP + 4, vP + 7, SP, SP + 3, sPB))
    e("buffer_load_dwordx4 v[%d:%d], v2, s[%d:%d], s%d offen sc1" % (vP + 8, vP + 11, SP, SP + 3, sPB))
    e("buffer_load_dwordx4 v[%d:%d], v2, s[%d:%d], s%d offen offset:256 sc1" % (vP + 12, vP + 15, SP, SP + 3, sPB))
    e("s_add_u32 s%d, s%d, 1" % (sCNT, sCNT))
    e("s_waitcnt vmcnt(0)")
    e("v_and_b32 v3, v%d, v%d" % (vP, vP + 1))
    for i in range(2, 16, 2):
        e("v_and_b32 v5, v%d, v%d" % (vP + i, vP + i + 1))
        e("v_and_b32 v3, v3, v5")
    e("v_and_b32 v3, 1, v3")
    e("v_cmp_eq_u32 vcc, 0, v3")
    e("s_cmp_ge_u32 s%d, 0x200000" % sCNT)
    e("s_cbranch_scc1 L_poll_done")
    e("s_cbranch_vccnz L_poll")
    e.label("L_poll_done")
    stamp()
    e("s_mov_b32 s%d, 0x%08x" % (sT1, f32(float(TROWS))))
    e("s_mov_b32 s%d, 0x%08x" % (sT2, f32(1.0 / L)))
    for r_ in range(4):
        e("v_mul_f32 v%d, s%d, v%d" % (vS + r_, sT1, vP + r_))
    for r_ in range(4):
        e("v_fmac_f32 v%d, v%d, v%d" % (vS + r_, vN1, vP + 8 + r_))
    for r_ in range(4):
        e("v_add_f32 v%d, v%d, v%d" % (vM + r_, vP + 4 + r_, vP + 12 + r_))
    dpp_reduce(vS, 4)
    for r_ in range(4):
        e("v_mul_f32 v%d, s%d, v%d" % (vS + r_, sT2, vS + r_))
    for r_ in range(4):
        e("v_sub_f32 v%d, v%d, v%d" % (vT + r_, vP + r_, vS + r_))
        e("v_sub_f32 v%d, v%d, v%d" % (vT + 4 + r_, vP + 8 + r_, vS + r_))
    for r_ in range(4):
        e("v_mul_f32 v%d, v%d, v%d" % (vT + r_, vT + r_, vT + r_))
        e("v_mul_f32 v%d, v%d, v%d" % (vT + 4 + r_, vT + 4 + r_, vT + 4 + r_))
    for r_ in range(4):
        e("v_fmac_f32 v%d, s%d, v%d" % (vM + r_, sT1, vT + r_))
    for r_ in range(4):
        e("v_fmac_f32 v%d, v%d, v%d" % (vM + r_, vN1, vT + 4 + r_))
    e("s_nop 0")
    dpp_reduce(vM, 4)
    e("v_mov_b32 v3, 0x%08x" % f32(1e-5))
    for r_ in range(4):
        e("v_fma_f32 v%d, v%d, s%d, v3" % (vM + r_, vM + r_, sT2))
    for r_ in range(4):
        e("v_rsq_f32 v%d, v%d" % (vM + r_, vM + r_))
    e("s_nop 0")
    vCA, vCB = WIN + 44, WIN + 48
    for r_ in range(4):
        e("v_mul_f32 v%d, v%d, v%d" % (vCA + r_, vM + r_, vGF + r_))
    for r_ in range(4):
        e("v_fma_f32 v%d, -v%d, v%d, v%d" % (vCB + r_, vS + r_, vCA + r_, vBF + r_))
    c0 = -2.0 * math.log2(math.e) * math.sqrt(2.0 / math.pi)
    c1 = c0 * 0.044715
    vK0, vK1, vONE = WIN + 52, WIN + 54, WIN + 56
    for k in (0, 1):
        e("v_mov_b32 v%d, 0x%08x" % (vK0 + k, f32(c0)))
        e("v_mov_b32 v%d, 0x%08x" % (vK1 + k, f32(c1)))
        e("v_mov_b32 v%d, 1.0" % (vONE + k))
    e("s_add_u32 s%d, s%d, 4096" % (sT1, sOB))
    stamp()
    for tp in range(16):
        y = H(tp)
        z = ACCC + 8 * (tp % 4)
        o = z + 4
        if not DEBUG_H:
            for hh in (0, 2):
                pk("v_pk_fma_f32", y + hh, y + hh, vCA + hh, vCB + hh)
            for hh in (0, 2):
                pk("v_pk_mul_f32", z + hh, y + hh, y + hh)
            for hh in (0, 2):
                pk("v_pk_fma_f32", z + hh, z + hh, vK1, vK0)
            for hh in (0, 2):
                pk("v_pk_mul_f32", z + hh, z + hh, y + hh)
            for r_ in range(4):
                e("v_exp_f32 v%d, v%d" % (z + r_, z + r_))
            for hh in (0, 2):
                pk("v_pk_add_f32", z + hh, z + hh, vONE)
            for r_ in range(4):
                e("v_rcp_f32 v%d, v%d" % (z + r_, z + r_))
            for hh in (0, 2):
                pk("v_pk_mul_f32", y + hh, y + hh, z + hh)
        e("v_cvt_pk_bf16_f32 v%d, v%d, v%d" % (o, y, y + 1))
        e("v_cvt_pk_bf16_f32 v%d, v%d, v%d" % (o + 1, y + 2, y + 3))
        set_exec(tp)
        sb = sOB if tp < 8 else sT1
        e("buffer_store_dwordx2 v[%d:%d], v4, s[%d:%d], s%d offen offset:%d" % (o, o + 1, SO, SO + 3, sb, (tp % 8) * 512))
        e("s_mov_b64 exec, -1")
    if STAMP:
        stamp()
        e("s_waitcnt vmcnt(0)")
        stamp()
        e("s_lshl_b32 s%d, s2, 2" % sT0)
        e("s_add_u32 s%d, s%d, s%d" % (sT0, sT0, sWAVE))
        e("s_lshl_b32 s%d, s%d, 7" % (sT0, sT0))
        e("s_add_u32 s%d, s%d, 0x%x" % (sT0, sT0, STAMP_OFF))
        e("v_mov_b32 v1, s%d" % sT0)
        e("s_mov_b64 exec, 1")
        for i in range(10):
            e("v_mov_b32 v2, s%d" % (sST + 2 * i))
            e("v_mov_b32 v3, s%d" % (sST + 2 * i + 1))
            e("global_store_dwordx2 v1, v[2:3], s[16:17] offset:%d" % (8 * i))
    e("s_endpgm")

    e.label("L_loader")
    vLW, vXO, vSL, vSI, vSO = 1, 2, 3, 4, 5
    RA, UT, RS = 20, 44, 60
    sX1, sS2, sSB, sID, sSI, sSOo = sXC, sX2, sXM, sXM + 1, sMF, sMF + 1
    e("s_sub_u32 s%d, s%d, 4" % (sWAVE, sWAVE))
    e("s_setprio %d" % opts.get("lprio", 0))
    e("s_add_u32 s%d, s16, %d" % (SS, S_OFF))
    e("s_addc_u32 s%d, s17, 0" % (SS + 1))
    e("s_and_b32 s%d, s%d, 0xffff" % (SS + 1, SS + 1))
    e("s_mov_b32 s%d, %d" % (SS + 2, S_BYTES))
    e("s_mov_b32 s%d, 0x00020000" % (SS + 3))
    e("v_lshrrev_b32 v10, 2, v0")
    e("v_and_b32 v11, 3, v0")
    e("v_lshrrev_b32 v12, 5, v0")
    e("v_lshlrev_b32 v12, 1, v12")
    e("v_xor_b32 v12, v12, v11")
    e("v_lshlrev_b32 v12, 4, v12")
    e("v_lshlrev_b32 v13, 11, v10")
    if opts.get("xstride"):
        e("v_mul_u32_u24 v13, %d, v10" % opts["xstride"])
    e("v_add_u32 v%d, v12, v13" % vXO)
    e("s_lshl_b32 s%d, s%d, 15" % (sT0, sWAVE))
    e("s_add_u32 s%d, s%d, s%d" % (sX1, sXB, sT0))
    e("s_mul_i32 s%d, s%d, %d" % (sMP, sWAVE, XBLK))
    e("v_lshrrev_b32 v10, 3, v0")
    e("v_lshrrev_b32 v11, 1, v0")
    e("v_and_b32 v11, 3, v11")
    e("v_and_b32 v12, 1, v0")
    e("v_lshrrev_b32 v13, 1, v10")
    e("v_and_b32 v13, 1, v13")
    e("s_and_b32 s%d, s%d, 1" % (sT0, sWAVE))
    e("s_lshl_b32 s%d, s%d, 1" % (sT0, sT0))
    e("v_or_b32 v13, s%d, v13" % sT0)
    e("v_xor_b32 v11, v11, v13")
    e("v_lshlrev_b32 v10, 9, v10")
    e("v_lshlrev_b32 v11, 5, v11")
    e("v_lshlrev_b32 v12, 4, v12")
    e("v_add3_u32 v10, v10, v11, v12")
    e("s_lshl_b32 s%d, s%d, 12" % (sT0, sWAVE))
    e("v_add_u32 v%d, s%d, v10" % (vLW, sT0))
    e("s_lshl_b32 s%d, s%d, 10" % (sM0W, sWAVE))
    e("s_mov_b32 s%d, s%d" % (sWC, sN2))
    e("s_mov_b32 s%d, 0" % sCC)
    e("s_mov_b32 s%d, 0" % sSQ)

    def late_setup():
        e("v_lshlrev_b32 v%d, 4, v0" % vSL)
        e("v_mov_b32 v6, 0")
        e("s_mov_b32 s%d, 0" % sSOo)
        e("v_lshrrev_b32 v10, 3, v0")
        e("v_and_b32 v11, 7, v0")
        e("v_lshlrev_b32 v12, 11, v10")
        e("v_lshlrev_b32 v13, 4, v11")
        e("v_add_u32 v%d, v12, v13" % vSI)
        e("v_lshrrev_b32 v12, 2, v11")
        e("v_mul_u32_u24 v12, %d, v12" % S_CC)
        e("v_lshlrev_b32 v13, 6, v10")
        e("v_add_u32 v12, v12, v13")
        e("v_and_b32 v13, 3, v11")
        e("v_lshlrev_b32 v13, 4, v13")
        e("v_add_u32 v%d, v12, v13" % vSO)
        e("s_mul_i32 s%d, s%d, %d" % (sSB, sGM, S_GM))
        e("s_lshl_b32 s%d, s%d, 10" % (sT0, sWAVE))
        e("s_add_u32 s%d, s%d, s%d" % (sS2, sSB, sT0))
        e("s_mov_b32 s%d, s%d" % (sID, sWAVE))

    TAPS = [[4 * i + o for i in range(8) if 4 * i + o < 31] for o in (0, 2, 1, 3)]
    RHO = [0, 2, 1, 3]
    S0 = opts.get('s0', 1)

    def tick(items, acc):
        if not opts.get("lstamp"):
            return
        items.append(("t", "s_memtime s[94:95]"))
        items.append(("t", "s_waitcnt lgkmcnt(0)"))
        items.append(("t", "s_sub_u32 s96, s94, s93"))
        items.append(("t", "s_add_u32 s%d, s%d, s96" % (acc, acc)))
        items.append(("t", "s_mov_b32 s93, s94"))

    def it_w(items, m, ccbase):
        if m > 47:
            return
        if m < 32:
            cc, j = divmod(m, 4)
            st = P1[j]
            for i, tap in enumerate(TAPS[j]):
                items.append(("t", "s_add_u32 m0, s%d, %d" % (sM0W, wslot_addr(st["slots"][i]))))
                items.append(("t", "s_add_u32 s%d, s%d, %d" % (sT0, sWC, (cc - ccbase) * 16384 + tap * 131072)))
                items.append(("v", ("W", m), "buffer_load_dwordx4 v%d, s[%d:%d], s%d offen lds" % (vLW, SW, SW + 3, sT0)))
        else:
            mm = m - 32
            cc, p = divmod(mm, 2)
            st = P2[mm % 4]
            for i in range(8):
                items.append(("t", "s_add_u32 m0, s%d, %d" % (sM0W, wslot_addr(st["slots"][i]))))
                items.append(("t", "s_add_u32 s%d, s%d, %d" % (sT0, sWC, ((cc - ccbase) * 16384 + (p * 8 + i) * 131072) & 0xffffffff)))
                items.append(("v", ("W", m), "buffer_load_dwordx4 v%d, s[%d:%d], s%d offen sc1 lds" % (vLW, SG, SG + 3, sT0)))

    def it_x1(items, m, ccbase):
        cc, j = divmod(m, 4)
        rel = RHO[j] * 512 + (cc - ccbase) * 64
        for ap in range(2):
            items.append(("t", "s_add_u32 m0, s%d, %d" % (sMP, j * SEQ + ap * 4 * XBLK)))
            items.append(("t", "s_add_u32 s%d, s%d, %d" % (sT0, sX1, ap * 131072 + rel)))
            items.append(("v", ("X", m), "buffer_load_dwordx4 v%d, s[%d:%d], s%d offen lds" % (vXO, SX, SX + 3, sT0)))
        items.append(("t", "s_mov_b32 m0, %d" % (j * SEQ + 8 * XBLK)))
        items.append(("t", "s_add_u32 s%d, s%d, %d" % (sT0, sXB, 8 * 32768 + rel)))
        items.append(("t", "s_mov_b64 exec, 0xfffffff"))
        items.append(("v", ("X", m), "buffer_load_dwordx4 v%d, s[%d:%d], s%d offen lds" % (vXO, SX, SX + 3, sT0)))
        items.append(("t", "s_mov_b64 exec, -1"))

    def it_x2(items, m, ccbase):
        if m > 47:
            return
        mm = m - 32
        cc, p = divmod(mm, 2)
        rel = p * S_P + (cc - ccbase) * S_CC
        items.append(("t", "s_add_u32 s%d, s%d, s%d" % (sT1, sMP, sSQ)))
        for ap in range(2):
            items.append(("t", "s_add_u32 m0, s%d, %d" % (sT1, ap * 4 * XBLK)))
            items.append(("t", "s_add_u32 s%d, s%d, %d" % (sT0, sS2, ap * 4096 + rel)))
            items.append(("v", ("X", m), "buffer_load_dwordx4 v%d, s[%d:%d], s%d offen sc1 lds" % (vSL, SS, SS + 3, sT0)))
        items.append(("t", "s_add_u32 m0, s%d, %d" % (sSQ, 8 * XBLK)))
        items.append(("t", "s_add_u32 s%d, s%d, %d" % (sT0, sSB, 8 * 1024 + rel)))
        items.append(("t", "s_mov_b64 exec, 0xfffffff"))
        items.append(("v", ("X", m), "buffer_load_dwordx4 v%d, s[%d:%d], s%d offen sc1 lds" % (vSL, SS, SS + 3, sT0)))
        items.append(("t", "s_mov_b64 exec, -1"))
        items.append(("t", "s_add_u32 s%d, s%d, %d" % (sSQ, sSQ, SEQ)))
        items.append(("t", "s_cmp_ge_u32 s%d, %d" % (sSQ, 3 * SEQ)))
        items.append(("t", "s_cselect_b32 s%d, 0, s%d" % (sSQ, sSQ)))

    labn = [0]

    def it_sload(items, slot):
        if opts.get("noS"):
            return
        T = lambda s_: items.append(("t", s_))
        bf = slot % 3
        ra, rb = RA + 8 * bf, RA + 8 * bf + 4
        T("s_min_u32 s%d, s%d, 33" % (sT1, sID))
        T("s_add_u32 s%d, s%d, 4" % (sID, sID))
        T("s_cmp_ge_u32 s%d, 17" % sT1)
        T("s_cselect_b32 s%d, 1, 0" % sT2)
        T("s_mul_i32 s%d, s%d, 17" % (sT0, sT2))
        T("s_sub_u32 s%d, s%d, s%d" % (sT1, sT1, sT0))
        T("s_lshl_b32 s%d, s%d, 14" % (sSI, sT1))
        T("s_add_u32 s%d, s%d, s%d" % (sSI, sSI, sXB0))
        T("s_lshl_b32 s%d, s%d, 9" % (sT0, sT2))
        T("s_add_u32 s%d, s%d, s%d" % (sSI, sSI, sT0))
        items.append(("v", ("SL", slot), "buffer_load_dwordx4 v[%d:%d], v%d, s[%d:%d], s%d offen offset:1024" % (ra, ra + 3, vSI, SX, SX + 3, sSI)))
        items.append(("v", ("SL", slot), "buffer_load_dwordx4 v[%d:%d], v%d, s[%d:%d], s%d offen offset:2048" % (rb, rb + 3, vSI, SX, SX + 3, sSI)))
        T("s_mul_i32 s%d, s%d, %d" % (sSOo, sT2, S_P))
        T("s_add_u32 s%d, s%d, s%d" % (sSOo, sSOo, sSB0))
        T("s_lshl_b32 s%d, s%d, 9" % (sT0, sT1))
        T("s_add_u32 s%d, s%d, s%d" % (sSOo, sSOo, sT0))
        T("s_and_b32 s%d, s%d, 1" % (sT0, sT1))
        T("s_lshl_b32 s%d, s%d, 5" % (sT0, sT0))
        T("v_xor_b32 v%d, s%d, v%d" % (6 + bf, sT0, vSO))
        T("v_add_u32 v%d, s%d, v%d" % (6 + bf, sSOo, 6 + bf))

    def it_sfin(items, task):
        if opts.get("noS"):
            return
        T = lambda s_: items.append(("t", s_))
        bf = task % 3
        ra, rb = RA + 8 * bf, RA + 8 * bf + 4
        items.append(("w", [("SL", task)]))
        for k in range(4):
            u = UT + 4 * k
            T("v_lshlrev_b32 v%d, 16, v%d" % (u, ra + k))
            T("v_and_b32 v%d, 0xffff0000, v%d" % (u + 1, ra + k))
            T("v_lshlrev_b32 v%d, 16, v%d" % (u + 2, rb + k))
            T("v_and_b32 v%d, 0xffff0000, v%d" % (u + 3, rb + k))
        for k in range(4):
            u = UT + 4 * k
            T("v_pk_add_f32 v[%d:%d], v[%d:%d], v[%d:%d]" % (u, u + 1, u, u + 1, u + 2, u + 3))
        for k in range(4):
            u = UT + 4 * k
            T("v_cvt_pk_bf16_f32 v%d, v%d, v%d" % (RS + 4 * bf + k, u, u + 1))
        items.append(("v", ("SS", task), "buffer_store_dwordx4 v[%d:%d], v%d, s[%d:%d], 0 offen%s" % (RS + 4 * bf, RS + 4 * bf + 3, 6 + bf, SS, SS + 3, "" if opts.get("splain") else " sc1")))

    sXB0, sSB0 = sA, sBB

    def barrier(items, n):
        need = [("W", n), ("X", n)] if n <= 47 else "all"
        if n == 4 * (S0 + 3) + 2:
            need = need + [("SS", k) for k in range(0, 40)]
        tick(items, 74)
        items.append(("w", need))
        tick(items, 77)
        items.append(("t", "s_barrier"))
        tick(items, 78)

    def poll(items):
        lab = "L_gpoll"
        items.append(("t", "v_mov_b32 v10, 0"))
        items.append(("t", "s_mov_b32 s%d, 0" % sCNT))
        items.append(("lab", lab))
        items.append(("t", "global_load_dword v11, v10, s[14:15] sc1"))
        items.append(("t", "s_add_u32 s%d, s%d, 1" % (sCNT, sCNT)))
        items.append(("drain",))
        items.append(("t", "v_readfirstlane_b32 s%d, v11" % sT0))
        items.append(("t", "s_cmp_ge_u32 s%d, 0x200000" % sCNT))
        items.append(("t", "s_cbranch_scc1 %s_d" % lab))
        items.append(("t", "s_cmp_lt_u32 s%d, 256" % sT0))
        items.append(("t", "s_cbranch_scc1 %s" % lab))
        items.append(("lab", lab + "_d"))

    def p1_iter(j):
        items = []
        last = (j == 7)
        labn[0] = 0 if not last else 100
        for s in range(4):
            n = 4 * j + s
            m = n + 3
            if last and s == 0:
                poll(items)
            if j == S0 + 3 and s == 2:
                items.append(("t", "s_cmp_lg_u32 s%d, 0" % sWAVE))
                items.append(("t", "s_cbranch_scc1 L_nosig"))
                items.append(("t", "v_mov_b32 v10, 0"))
                items.append(("t", "v_mov_b32 v11, 1"))
                items.append(("t", "s_mov_b64 exec, 1"))
                items.append(("t", "global_atomic_add v10, v11, s[14:15]"))
                items.append(("t", "s_mov_b64 exec, -1"))
                items.append(("lab", "L_nosig"))
            if S0 <= j < S0 + 3:
                for k in {0: [0, 1], 1: [2]}.get(s, []):
                    it_sload(items, 3 * j + k)
            if m < 32:
                it_x1(items, m, j)
            if n + 2 >= 32:
                it_x2(items, n + 2, 0)
            it_w(items, m, j)
            if S0 <= j < S0 + 3:
                for k in {2: [0], 3: [1, 2]}.get(s, []):
                    it_sfin(items, 3 * j + k)
            barrier(items, n + 1)
        return items

    def p2_iter(it):
        items = []
        for s in range(4):
            n = 32 + 4 * it + s
            it_x2(items, n + 2, 2 * it)
            it_w(items, n + 3, 2 * it)
            barrier(items, n + 1)
        return items

    pro = []
    for m in range(3):
        it_x1(pro, m, 0)
        it_w(pro, m, 0)
    pro.append(("late",))
    barrier(pro, 0)
    blocks = [("pro", pro)] + [("p1", p1_iter(j)) for j in range(8)] + [("p2", p2_iter(it)) for it in range(4)]
    qv = []
    for name, items in blocks:
        for k, itx in enumerate(items):
            if itx[0] == "v":
                qv.append(itx[1])
            elif itx[0] == "drain":
                qv = []
            elif itx[0] == "w":
                tags = itx[1]
                if tags == "all":
                    n = 0
                else:
                    idx = -1
                    for i, t in enumerate(qv):
                        if t in tags:
                            idx = i
                    n = len(qv) - 1 - idx if idx >= 0 else 63
                n = min(n, 63)
                if n < len(qv):
                    qv = qv[len(qv) - n:] if n > 0 else []
                items[k] = ("wn", n)

    def merge(lists):
        base = lists[0]
        out = []
        for k, itx in enumerate(base):
            if itx[0] == "wn":
                out.append(("wn", min(l[k][1] for l in lists)))
            else:
                for l in lists:
                    assert l[k][0] == itx[0] and l[k][-1] == itx[-1], (l[k], itx)
                out.append(itx)
        return out

    def put(items):
        for itx in items:
            if itx[0] == "t":
                e(itx[1])
            elif itx[0] == "v":
                e(itx[2])
            elif itx[0] == "lab":
                e.label(itx[1])
            elif itx[0] == "drain":
                e("s_waitcnt vmcnt(0)")
            elif itx[0] == "wn":
                e("s_waitcnt vmcnt(%d)" % itx[1])
            elif itx[0] == "late":
                late_setup()
                e("s_add_u32 s%d, s%d, s%d" % (sXB0, sXB, sN2))
                e("s_mul_i32 s%d, s%d, %d" % (sSB0, sNT, 2 * S_CC))
                e("s_add_u32 s%d, s%d, s%d" % (sSB0, sSB0, sSB))

    put(blocks[0][1])
    if opts.get("lstamp"):
        for i in range(5):
            e("s_mov_b32 s%d, 0" % (74 + i))
    def adv():
        e("s_add_u32 s%d, s%d, 16384" % (sWC, sWC))
        e("s_add_u32 s%d, s%d, 64" % (sX1, sX1))
        e("s_add_u32 s%d, s%d, 64" % (sXB, sXB))
        e("s_add_u32 s%d, s%d, 1" % (sCC, sCC))

    for j in range(S0):
        put(blocks[1 + j][1])
        adv()
    e.label("L_l1")
    put(merge([blocks[1 + j][1] for j in range(S0, S0 + 3)]))
    adv()
    e("s_cmp_lt_u32 s%d, %d" % (sCC, S0 + 3))
    e("s_cbranch_scc1 L_l1")
    for j in range(S0 + 3, 7):
        put(blocks[1 + j][1])
        adv()
    if opts.get("lstamp"):
        e("s_lshl_b32 s%d, s2, 2" % sT0)
        e("s_add_u32 s%d, s%d, s%d" % (sT0, sT0, sWAVE))
        e("s_lshl_b32 s%d, s%d, 7" % (sT0, sT0))
        e("s_add_u32 s%d, s%d, 0x%x" % (sT0, sT0, STAMP_OFF + (1 << 20)))
        e("v_mov_b32 v10, s%d" % sT0)
        e("s_mov_b64 exec, 1")
        for i in range(5):
            e("v_mov_b32 v11, s%d" % (74 + i))
            e("global_store_dword v10, v11, s[16:17] offset:%d" % (4 * i))
        e("s_mov_b64 exec, -1")
        e("s_waitcnt vmcnt(0)")
    e.c("pass1 last chunk")
    put(blocks[8][1])
    e("s_mov_b32 s%d, s%d" % (sWC, sN2))
    e("s_mov_b32 s%d, 0" % sCC)
    e.label("L_l2")
    put(merge([blocks[9 + it][1] for it in range(3)]))
    e("s_add_u32 s%d, s%d, 32768" % (sWC, sWC))
    e("s_add_u32 s%d, s%d, %d" % (sS2, sS2, 2 * S_CC))
    e("s_add_u32 s%d, s%d, %d" % (sSB, sSB, 2 * S_CC))
    e("s_add_u32 s%d, s%d, 1" % (sCC, sCC))
    e("s_cmp_lt_u32 s%d, 3" % sCC)
    e("s_cbranch_scc1 L_l2")
    e.c("pass2 last iteration")
    put(blocks[12][1])
    e.label("L_end")
    e("s_endpgm")

    hdr = """; Kernarg layout for this problem (56 bytes, ptrs only, base s[0:1]):
;   offset   0: d_in[0] x  shape=(2, 16000, 256) dtype=bfloat16
;   offset   8: d_in[1] w  shape=(31, 256, 256) dtype=bfloat16
;   offset  16: d_in[2] gn_gamma  shape=(256,) dtype=bfloat16
;   offset  24: d_in[3] gn_beta  shape=(256,) dtype=bfloat16
;   offset  32: d_out     shape=(2, 7985, 256) dtype=bfloat16
;   offset  40: d_debug   256 bytes
;   offset  48: d_ws      workspace
; Generated by work/gen3.py (implicit-GEMM conv via 2-parallel fast FIR + fused group norm + GELU)
; @launch grid=(256,1,1) block=(512,1,1) lds=%d
.amdgcn_target "amdgcn-amd-amdhsa--gfx950"
.text
.globl %s_kernel
.p2align 8
.type %s_kernel,@function
%s_kernel:
""" % (LDS_TOTAL, NAME, NAME, NAME)
    ftr = """.section .rodata,"a"
.p2align 6
.amdhsa_kernel %s_kernel
  .amdhsa_next_free_vgpr 200
  .amdhsa_next_free_sgpr 100
  .amdhsa_accum_offset 200
  .amdhsa_group_segment_fixed_size 0
  .amdhsa_kernarg_size 56
  .amdhsa_user_sgpr_count 2
  .amdhsa_user_sgpr_kernarg_segment_ptr 1
  .amdhsa_system_sgpr_workgroup_id_x 1
.end_amdhsa_kernel
""" % NAME
    return hdr + e.text() + ftr


if __name__ == "__main__":
    opts = {}
    out = "cdna_kernels/%s.s" % NAME
    for a in sys.argv[1:]:
        if a.startswith("-o"):
            out = a[2:]
        elif "=" in a:
            k, v = a.split("=")
            opts[k] = int(v)
        else:
            opts[a] = True
    open(out, "w").write(gen(opts))
    print("wrote", out)
```

```python
import sys
import struct
import math

NAME = "standalone__self_sup_conv_stem_wavlm__speech"

B_, T, D, KT = 2, 16000, 256, 31
L = 7985
X_BYTES = B_ * T * D * 2
W_BYTES = KT * D * D * 2
OUT_BYTES = B_ * L * D * 2
TROWS = 255
LAST_VALID = L - 31 * TROWS

YBLK = 1056
YBUF = 16 * YBLK + 7 * 128
XBLK = 1088
SEQ = 8 * XBLK + 7 * 64
WBASE = 2 * YBUF
WSTEP = 4096
LDS_TOTAL = 163840
assert WBASE + 31 * WSTEP <= LDS_TOTAL and 3 * SEQ + WSTEP <= WBASE


def wslot_addr(n):
    return WBASE + n * WSTEP if n < 31 else 3 * SEQ


FL_OFF = 32 * 4096
PART_BYTES = FL_OFF + 64 * 128
GS_OFF = 1 << 20
GS_BYTES = 16 * 131072
S_OFF = 4 << 20
S_CC = 144 * 64
S_P = 8 * S_CC
S_GM = 2 * S_P
S_BYTES = 64 * S_GM
STAMP_OFF = 16 << 20


def f32(x):
    return struct.unpack("<I", struct.pack("<f", x))[0]


class Emit:
    def __init__(self):
        self.lines = []

    def __call__(self, s):
        self.lines.append("    " + s)

    def label(self, s):
        self.lines.append(s + ":")

    def c(self, s):
        self.lines.append("    ; " + s)

    def text(self):
        return "\n".join(self.lines) + "\n"


def gen(opts):
    e = Emit()
    DEBUG_H = opts.get("debug_h", False)
    STAMP = opts.get("stamp", False)
    S0 = opts.get("s0", 1)
    GSL = opts.get("gsl", 0)
    SPLIT = opts.get("split", 1)

    SX, SW, SO, SP, SG, SS = 20, 24, 28, 32, 36, 40
    sWAVE, sNT, sGM, sB, sST_, sXB, sN2 = 44, 45, 46, 47, 48, 49, 50
    sT0, sT1, sT2 = 51, 52, 53
    sCC = 54
    sL0, sL1, sL2, sL3, sL4, sL5, sL6 = 55, 56, 57, 58, 59, 60, 61
    sMF, sMP = 62, 64
    sA, sBB, sNV = 66, 67, 68
    sOB, sCNT, sRN = 69, 70, 71
    sPB = 72
    sLH, sDT, sROLE = 73, 74, 75
    sC0 = 76
    sST = 78
    nstamp = [0]

    def stamp():
        if not STAMP:
            return
        i = nstamp[0]
        nstamp[0] += 1
        assert i < 8
        e("s_memtime s[94:95]")
        e("s_memrealtime s[96:97]")
        e("s_waitcnt lgkmcnt(0)")
        e("s_mov_b32 s%d, s94" % (sST + 2 * i))
        e("s_mov_b32 s%d, s96" % (sST + 2 * i + 1))

    vR, vG = 10, 11
    vGAM, vBET = 12, 14
    vPO = 16

    e.c("entry")
    e("s_cmp_ge_u32 s2, 256")
    e("s_cbranch_scc1 L_end")
    e("s_load_dwordx8 s[4:11], s[0:1], 0")
    e("s_load_dwordx4 s[12:15], s[0:1], 32")
    e("s_load_dwordx2 s[16:17], s[0:1], 48")
    e("v_lshrrev_b32 v1, 6, v0")
    e("v_mov_b32 v19, v0")
    e("v_and_b32 v0, 63, v0")
    e("s_and_b32 s%d, s2, 7" % sT0)
    e("v_readfirstlane_b32 s%d, v1" % sWAVE)
    e("s_lshr_b32 s%d, s2, 3" % sT1)
    if opts.get("map2"):
        e("s_lshr_b32 s%d, s%d, 3" % (sNT, sT1))
        e("s_and_b32 s%d, s%d, 7" % (sT1, sT1))
    else:
        e("s_and_b32 s%d, s%d, 3" % (sNT, sT1))
        e("s_lshr_b32 s%d, s%d, 2" % (sT1, sT1))
    e("s_lshl_b32 s%d, s%d, 3" % (sGM, sT0))
    e("s_add_u32 s%d, s%d, s%d" % (sGM, sGM, sT1))
    e("s_lshr_b32 s%d, s%d, 5" % (sB, sGM))
    e("s_lshr_b32 s%d, s%d, 2" % (sROLE, sWAVE))
    e("s_and_b32 s%d, s%d, 3" % (sWAVE, sWAVE))
    e("s_and_b32 s%d, s%d, 31" % (sST_, sGM))
    e("s_mul_i32 s%d, s%d, %d" % (sXB, sB, T * 512))
    e("s_mul_i32 s%d, s%d, %d" % (sT0, sST_, 2 * TROWS * 512))
    e("s_add_u32 s%d, s%d, s%d" % (sXB, sXB, sT0))
    e("s_lshl_b32 s%d, s%d, 7" % (sN2, sNT))
    vLW, vXO, vSL, vSO = 1, 2, 3, 5
    sMW, sMX, sWC, sX1, sS2, sSI, sSO_ = sL0, sL1, sL2, sL3, sL4, sL5, sL6
    e("v_lshrrev_b32 v20, 3, v0")
    e("v_and_b32 v21, 7, v0")
    e("v_lshlrev_b32 v22, 11, v20")
    e("v_lshlrev_b32 v23, 4, v21")
    e("v_add_u32 v%d, v22, v23" % vXO)
    e("s_lshl_b32 s%d, s%d, 14" % (sT0, sWAVE))
    e("s_add_u32 s%d, s%d, s%d" % (sX1, sXB, sT0))
    e("s_mul_i32 s%d, s%d, %d" % (sMX, sWAVE, YBLK))
    e("v_lshrrev_b32 v22, 1, v0")
    e("v_and_b32 v22, 3, v22")
    e("v_and_b32 v23, 1, v0")
    e("v_lshrrev_b32 v24, 1, v20")
    e("v_and_b32 v24, 1, v24")
    e("s_and_b32 s%d, s%d, 1" % (sT0, sWAVE))
    e("s_lshl_b32 s%d, s%d, 1" % (sT0, sT0))
    e("v_or_b32 v24, s%d, v24" % sT0)
    e("v_xor_b32 v22, v22, v24")
    e("v_lshlrev_b32 v24, 9, v20")
    e("v_lshlrev_b32 v22, 5, v22")
    e("v_lshlrev_b32 v23, 4, v23")
    e("v_add3_u32 v24, v24, v22, v23")
    e("s_lshl_b32 s%d, s%d, 12" % (sT0, sWAVE))
    e("v_add_u32 v%d, s%d, v24" % (vLW, sT0))
    e("s_lshl_b32 s%d, s%d, 10" % (sMW, sWAVE))
    e("s_mov_b32 s%d, s%d" % (sWC, sN2))
    e("s_mov_b32 s%d, 0" % sCC)

    e("s_waitcnt lgkmcnt(0)")
    for (srd, p, nbytes) in ((SX, 4, X_BYTES), (SW, 6, W_BYTES)):
        e("s_mov_b32 s%d, s%d" % (srd, p))
        e("s_and_b32 s%d, s%d, 0xffff" % (srd + 1, p + 1))
        e("s_mov_b32 s%d, %d" % (srd + 2, nbytes))
        e("s_mov_b32 s%d, 0x00020000" % (srd + 3))

    def more_srds():
        for (srd, p, nbytes) in ((SO, 12, OUT_BYTES), (SP, 16, PART_BYTES)):
            e("s_mov_b32 s%d, s%d" % (srd, p))
            e("s_and_b32 s%d, s%d, 0xffff" % (srd + 1, p + 1))
            e("s_mov_b32 s%d, %d" % (srd + 2, nbytes))
            e("s_mov_b32 s%d, 0x00020000" % (srd + 3))
        for (srd, off, nbytes) in ((SG, GS_OFF, GS_BYTES), (SS, S_OFF, S_BYTES)):
            e("s_add_u32 s%d, s16, %d" % (srd, off))
            e("s_addc_u32 s%d, s17, 0" % (srd + 1))
            e("s_and_b32 s%d, s%d, 0xffff" % (srd + 1, srd + 1))
            e("s_mov_b32 s%d, %d" % (srd + 2, nbytes))
            e("s_mov_b32 s%d, 0x00020000" % (srd + 3))

    def epi_setup():
        e("v_and_b32 v%d, 15, v0" % vR)
        e("v_lshrrev_b32 v%d, 4, v0" % vG)
        e("s_lshl_b32 s%d, s%d, 5" % (sT2, sWAVE))
        e("s_add_u32 s%d, s%d, s%d" % (sT2, sT2, sN2))
        e("v_lshlrev_b32 v17, 3, v%d" % vG)
        e("v_add_u32 v17, s%d, v17" % sT2)
        e("global_load_dwordx2 v[%d:%d], v17, s[8:9]" % (vGAM, vGAM + 1))
        e("global_load_dwordx2 v[%d:%d], v17, s[10:11]" % (vBET, vBET + 1))
        e("s_lshl_b32 s%d, s%d, 4" % (sPB, sB))
        e("s_lshl_b32 s%d, s%d, 2" % (sT2, sNT))
        e("s_add_u32 s%d, s%d, s%d" % (sPB, sPB, sT2))
        e("s_add_u32 s%d, s%d, s%d" % (sPB, sPB, sWAVE))
        e("s_lshl_b32 s%d, s%d, 12" % (sPB, sPB))
        e("v_lshlrev_b32 v%d, 4, v%d" % (vPO, vG))

    e("s_cmp_eq_u32 s%d, 0" % sROLE)
    e("s_cbranch_scc1 L_consumer")
    idx_c = len(e.lines)
    e.label("L_consumer")

    vX = [1, 2]
    vXD = [[3, 4], [5, 6]]
    vY = 195
    vW = [7, 8, 9]
    sSQ = sL5
    ACCB, ACCC, ACCA = 20, 52, 84
    WIN = 116
    WF = [176, 180, 184, 188]
    sG0, sG1, sGD, sSL = sL0, sL1, sL2, sL3
    e.c("consumer setup")
    stamp()
    if opts.get("cpf", 1):
        e("s_getpc_b64 s[%d:%d]" % (sMF, sMF + 1))
        e.label("L_pc")
        e("s_sub_u32 s%d, s%d, L_pc-%s_kernel" % (sMF, sMF, NAME))
        e("s_subb_u32 s%d, s%d, 0" % (sMF + 1, sMF + 1))
        e("v_lshlrev_b32 v194, 7, v19")
        e("v_min_u32 v194, L_end-%s_kernel, v194" % NAME)
        e("global_load_dword v193, v194, s[%d:%d]" % (sMF, sMF + 1))
        e("v_lshlrev_b32 v194, 4, v19")
        e("v_add_u32 v194, 0x8000, v194")
        e("v_min_u32 v194, L_end-%s_kernel, v194" % NAME)
        e("global_load_dword v193, v194, s[%d:%d]" % (sMF, sMF + 1))
    e("s_setprio %d" % opts.get("cprio", 2))
    more_srds()
    e("s_lshr_b32 s%d, s2, 4" % sT0)
    e("s_lshr_b32 s%d, s%d, 3" % (sT1, sT0))
    e("s_and_b32 s%d, s%d, 7" % (sT2, sT0))
    e("s_lshl_b32 s%d, s%d, 2" % (sT2, sT2))
    e("s_add_u32 s%d, s%d, s%d" % (sT2, sT2, sT1))
    e("s_lshl_b32 s%d, s%d, 17" % (sT2, sT2))
    e("s_and_b32 s%d, s2, 15" % sT1)
    e("s_lshl_b32 s%d, s%d, 13" % (sT1, sT1))
    e("s_add_u32 s%d, s%d, s%d" % (sG0, sT2, sT1))
    e("s_lshl_b32 s%d, s%d, 17" % (sT0, sT0))
    e("s_add_u32 s%d, s%d, s%d" % (sGD, sT0, sT1))
    e("s_add_u32 s%d, s%d, %d" % (sG1, sG0, 2 * 131072))
    e("v_lshlrev_b32 v18, 5, v19")
    g0, g1, gu = ACCA, ACCA + 8, ACCA + 16

    def gs_loads():
        e("buffer_load_dwordx4 v[%d:%d], v18, s[%d:%d], s%d offen" % (g0, g0 + 3, SW, SW + 3, sG0))
        e("buffer_load_dwordx4 v[%d:%d], v18, s[%d:%d], s%d offen offset:16" % (g0 + 4, g0 + 7, SW, SW + 3, sG0))
        e("buffer_load_dwordx4 v[%d:%d], v18, s[%d:%d], s%d offen" % (g1, g1 + 3, SW, SW + 3, sG1))
        e("buffer_load_dwordx4 v[%d:%d], v18, s[%d:%d], s%d offen offset:16" % (g1 + 4, g1 + 7, SW, SW + 3, sG1))

    if GSL == 0:
        gs_loads()
    epi_setup()
    e("s_lshl_b32 s%d, s%d, 7" % (sSL, sST_))
    e("s_add_u32 s%d, s%d, s%d" % (sSL, sSL, sPB))
    for i in range(64):
        e("v_mov_b32 v%d, 0" % (ACCB + i))
    for i in range(4):
        e("v_mov_b32 v%d, 0" % (196 + i))

    sFL = sLH
    e("s_lshl_b32 s%d, s%d, 7" % (sFL, sGM))
    e("s_lshl_b32 s%d, s%d, 2" % (sT0, sNT))
    e("s_add_u32 s%d, s%d, s%d" % (sFL, sFL, sT0))
    e("s_add_u32 s%d, s%d, %d" % (sFL, sFL, FL_OFF))

    def clear_slot():
        e("v_cmp_eq_u32 vcc, 0, v%d" % vR)
        e("s_and_saveexec_b64 s[%d:%d], vcc" % (sC0, sC0 + 1))
        e("buffer_store_dwordx4 v[196:199], v%d, s[%d:%d], s%d offen sc1" % (vPO, SP, SP + 3, sSL))
        e("buffer_store_dwordx4 v[196:199], v%d, s[%d:%d], s%d offen offset:64 sc1" % (vPO, SP, SP + 3, sSL))
        e("s_mov_b64 exec, 15")
        e("v_lshlrev_b32 v192, 4, v0")
        e("buffer_store_dword v196, v192, s[%d:%d], s%d offen sc1" % (SP, SP + 3, sFL))
        e("s_mov_b64 exec, -1")

    e("v_mul_u32_u24 v17, %d, v%d" % (YBLK, vR))
    e("v_lshlrev_b32 v3, 4, v%d" % vG)
    e("v_add_u32 v%d, v17, v3" % vY)
    for ee in (0, 1):
        if ee == 0:
            e("v_mov_b32 v17, v%d" % vR)
        else:
            e("v_add_u32 v17, 1, v%d" % vR)
        e("v_and_b32 v3, 1, v17")
        e("v_lshrrev_b32 v17, 1, v17")
        e("v_mul_u32_u24 v17, %d, v17" % XBLK)
        e("v_lshlrev_b32 v4, 9, v3")
        e("v_add_u32 v17, v17, v4")
        e("v_lshlrev_b32 v3, 1, v3")
        e("v_xor_b32 v3, v3, v%d" % vG)
        e("v_lshlrev_b32 v3, 4, v3")
        e("v_add_u32 v%d, v17, v3" % vX[ee])
    e("v_lshrrev_b32 v3, 2, v%d" % vR)
    e("v_and_b32 v4, 3, v0")
    e("v_lshrrev_b32 v5, 1, v3")
    e("v_and_b32 v6, 1, v%d" % vG)
    e("v_lshlrev_b32 v6, 1, v6")
    e("v_or_b32 v5, v5, v6")
    e("v_xor_b32 v5, s%d, v5" % sWAVE)
    e("v_lshlrev_b32 v5, 5, v5")
    e("v_lshlrev_b32 v4, 3, v4")
    e("v_add_u32 v5, v5, v4")
    e("v_lshlrev_b32 v3, 7, v3")
    e("v_add_u32 v5, v5, v3")
    e("v_lshlrev_b32 v3, 10, v%d" % vG)
    e("v_add_u32 v%d, v5, v3" % vW[0])
    e("v_add_u32 v%d, 0x10000, v%d" % (vW[1], vW[0]))
    e("v_add_u32 v%d, 0x20000, v%d" % (vW[2], vW[0]))
    e("v_mov_b32 v%d, v%d" % (vXD[0][0], vX[0]))
    e("v_mov_b32 v%d, v%d" % (vXD[0][1], vX[1]))
    e("s_mov_b32 s%d, 0" % sSQ)
    e("s_mov_b32 s%d, 0" % sCC)

    class Q:
        def __init__(self):
            self.q = []

        def issue(self, tag):
            self.q.append(tag)

        def need(self, tags):
            idx = -1
            for i, t in enumerate(self.q):
                if t in tags:
                    idx = i
            if idx < 0:
                return
            n = min(len(self.q) - 1 - idx, 15)
            e("s_waitcnt lgkmcnt(%d)" % n)
            self.q = self.q[len(self.q) - n:] if n > 0 else []

        def drain(self):
            e("s_waitcnt lgkmcnt(0)")
            self.q = []

    q = Q()

    def rd_w(slot, buf, half):
        a = wslot_addr(slot) + half * 512
        r = WF[buf] + 2 * half
        e("ds_read_b64_tr_b16 v[%d:%d], v%d offset:%d" % (r, r + 1, vW[a >> 16], a & 0xffff))
        q.issue(("w", buf, half))

    def rd_x(st, u):
        ee, up = u >> 3, u & 7
        r = WIN + 4 * u
        if st["dyn"] is None:
            e("ds_read_b128 v[%d:%d], v%d offset:%d" % (r, r + 3, vY, st["xoff"] + ee * YBLK + up * 128))
        else:
            e("ds_read_b128 v[%d:%d], v%d offset:%d" % (r, r + 3, vXD[st["dyn"]][ee], up * 64))
        q.issue(("x", u))

    def mfma(acc, t, buf, u):
        q.need({("w", buf, 0), ("w", buf, 1), ("x", u)})
        a = acc + 4 * t
        w = WF[buf]
        x = WIN + 4 * u
        e("v_mfma_f32_16x16x32_bf16 v[%d:%d], v[%d:%d], v[%d:%d], v[%d:%d]" % (a, a + 3, w, w + 3, x, x + 3, a, a + 3))

    def groups_of(st):
        return [(0, 1), (2, 3), (4, 5), (6, 7)] if st["n"] == 8 else [(0,), (1, 2), (3, 4), (5, 6)]

    def wreads(st, k):
        out = []
        for j, tap in enumerate(groups_of(st)[k]):
            for h in (0, 1):
                out.append(("w", st["slots"][tap], 2 * (k & 1) + j, h))
        return out

    def do_read(st, rd):
        if rd[0] == "w":
            rd_w(rd[1], rd[2], rd[3])
        else:
            rd_x(st, rd[1])

    def next_prefetch(cur, nxt):
        a = groups_of(cur)[3][0]
        ws = wreads(nxt, 0)
        xs = []
        for m in range(9):
            pos = -1 if m < a else 2 * (m - a)
            xs.append((pos, ("x", m)))
        return [(-1, ws[0]), (-1, ws[1]), xs[0], xs[1]] + [(-1, r) for r in ws[2:]] + xs[2:]

    def stage(cur, nxt, with_mfma=True, only_last=False, pre_last=None, fill=None):
        gs = groups_of(cur)
        loaded = 9
        for k in range(4):
            if only_last and k < 3:
                continue
            taps = gs[k]
            seqm = [(t, tap) for t in range(8) for tap in taps]
            if k < 3:
                nt = gs[k + 1]
                hi = nt[-1] + 7
                pend = [(-1, cur, r) for r in wreads(cur, k + 1)]
                pend += [(-1, cur, ("x", u)) for u in range(loaded, hi + 1)]
                loaded = max(loaded, hi + 1)
            else:
                if pre_last is not None:
                    pre_last()
                q.drain()
                e("s_barrier")
                pend = [(pos, nxt, r) for (pos, r) in next_prefetch(cur, nxt)]
            for pos, (t, tap) in enumerate(seqm):
                if with_mfma:
                    mfma(cur["acc"], t, 2 * (k & 1) + taps.index(tap), t + tap)
                did = False
                for j, (ep, st, r) in enumerate(pend):
                    if ep <= pos:
                        do_read(st, r)
                        pend.pop(j)
                        did = True
                        break
                if fill:
                    for _ in range(1 if did else 2):
                        if fill:
                            e(fill.pop(0))
            for (ep, st, r) in pend:
                do_read(st, r)

    P1 = []
    tn = 0
    for j in range(4):
        for kh in range(2):
            n = 7 if j == 3 else 8
            P1.append(dict(acc=(ACCB, ACCC, ACCB, ACCC)[j], dyn=None, xoff=(j & 1) * YBUF + kh * 64, n=n, j=j, kh=kh,
                           slots=[(tn + i) % 31 for i in range(n)]))
            tn += n
    assert tn == 62
    P2 = [dict(acc=ACCA, dyn=j & 1, n=8, slots=list(range(8 * j, 8 * j + 8))) for j in range(4)]

    def itstamp(base, sh=2):
        if not opts.get("itstamp"):
            return
        e("s_memtime s[94:95]")
        e("s_lshl_b32 s96, s2, 2")
        e("s_add_u32 s96, s96, s%d" % sWAVE)
        e("s_lshl_b32 s96, s96, 7")
        e("s_add_u32 s96, s96, 0x%x" % (STAMP_OFF + (2 << 20) + 4 * base))
        e("s_lshl_b32 s97, s%d, %d" % (sCC, sh))
        e("s_add_u32 s96, s96, s97")
        e("s_waitcnt lgkmcnt(0)")
        e("v_mov_b32 v192, s96")
        e("v_mov_b32 v193, s94")
        e("global_store_dword v192, v193, s[16:17]")

    def gs_math():
        e("s_waitcnt vmcnt(0)")
        for k in range(8):
            u = gu + 4 * (k % 2)
            e("v_lshlrev_b32 v%d, 16, v%d" % (u, g0 + k))
            e("v_and_b32 v%d, 0xffff0000, v%d" % (u + 1, g0 + k))
            e("v_lshlrev_b32 v%d, 16, v%d" % (u + 2, g1 + k))
            e("v_and_b32 v%d, 0xffff0000, v%d" % (u + 3, g1 + k))
            e("v_pk_add_f32 v[%d:%d], v[%d:%d], v[%d:%d] neg_lo:[0,1] neg_hi:[0,1]" % (u, u + 1, u, u + 1, u + 2, u + 3))
            e("v_cvt_pk_bf16_f32 v%d, v%d, v%d" % (g0 + k, u, u + 1))
        e("buffer_store_dwordx4 v[%d:%d], v18, s[%d:%d], s%d offen sc1" % (g0, g0 + 3, SG, SG + 3, sGD))
        e("buffer_store_dwordx4 v[%d:%d], v18, s[%d:%d], s%d offen offset:16 sc1" % (g0 + 4, g0 + 7, SG, SG + 3, sGD))
        clear_slot()

    def signal(lab, p2):
        if p2:
            e("s_cmp_lg_u32 s%d, 0" % sCC)
            e("s_cbranch_scc1 %s" % lab)
        else:
            e("s_cmp_eq_u32 s%d, 0" % sCC)
            e("s_cbranch_scc1 %s" % lab)
        e("s_cmp_lg_u32 s%d, 0" % sWAVE)
        e("s_cbranch_scc1 %s" % lab)
        if p2:
            e("v_mov_b32 v192, 48")
        else:
            e("s_lshl_b32 s%d, s%d, 4" % (sT0, sCC))
            e("s_sub_u32 s%d, s%d, 16" % (sT0, sT0))
            e("v_mov_b32 v192, s%d" % sT0)
        e("v_mov_b32 v193, 1")
        e("s_mov_b64 exec, 1")
        e("buffer_store_dword v193, v192, s[%d:%d], s%d offen sc1" % (SP, SP + 3, sFL))
        if not p2:
            e("s_cmp_lg_u32 s%d, 1" % sCC)
            e("s_cbranch_scc1 %s_x" % lab)
            e("global_atomic_add v192, v193, s[14:15]")
            e.label(lab + "_x")
        e("s_mov_b64 exec, -1")
        e("s_nop 3")
        e.label(lab)

    if opts.get("xt"):
        e("s_lshl_b32 s%d, s%d, 2" % (sT1, sNT))
        e("s_add_u32 s%d, s%d, s%d" % (sT1, sT1, sWAVE))
        e("s_lshl_b32 s%d, s%d, 9" % (sT1, sT1))
        e("s_add_u32 s%d, s%d, s%d" % (sL6, sXB, sT1))
        e("v_min_u32 v19, 33, v0")
        e("v_lshlrev_b32 v19, 13, v19")
    e.c("first barrier + initial reads")
    stage(P1[7], P1[0], with_mfma=False, only_last=True)
    stamp()
    itstamp(0)
    if GSL == 1:
        gs_loads()
    e.label("L_p1")
    for j in range(8):
        e.c("pass1 stage %d" % j)
        if j < 7:
            stage(P1[j], P1[j + 1])
        else:
            qsave = list(q.q)
            e("s_cmp_eq_u32 s%d, 3" % sCC)
            e("s_cbranch_scc1 L_p1_last")
            stage(P1[7], P1[0])
        if j == 3:
            e("s_cmp_lg_u32 s%d, 0" % sCC)
            e("s_cbranch_scc1 L_nogs")
            if GSL == 2:
                gs_loads()
            else:
                gs_math()
            e.label("L_nogs")
            signal("L_nosig", False)
            if opts.get("xt"):
                e("s_add_u32 s%d, s%d, 128" % (sL6, sL6))
                e("buffer_load_dword v194, v19, s[%d:%d], s%d offen" % (SX, SX + 3, sL6))
            itstamp(1, 3)
    e("s_cmp_lg_u32 s%d, 0" % sCC)
    e("s_cbranch_scc1 L_nodr")
    e("s_waitcnt vmcnt(0)")
    e.label("L_nodr")
    if GSL == 2:
        e("s_cmp_lg_u32 s%d, 0" % sCC)
        e("s_cbranch_scc1 L_nogs2")
        gs_math()
        e.label("L_nogs2")
    itstamp(2, 3)
    e("s_add_u32 s%d, s%d, 1" % (sCC, sCC))
    e("s_branch L_p1")
    e.label("L_p1_last")
    q.q = qsave
    stage(P1[7], P2[0])
    itstamp(2, 3)

    def pk(op, d, a, b, c=None, mods=""):
        s_ = "%s v[%d:%d], v[%d:%d], v[%d:%d]" % (op, d, d + 1, a, a + 1, b, b + 1)
        if c is not None:
            s_ += ", v[%d:%d]" % (c, c + 1)
        e(s_ + mods)

    NEG = " neg_lo:[0,1] neg_hi:[0,1]"
    NEG2 = " neg_lo:[1,1] neg_hi:[1,1]"
    for r_ in range(4):
        e("v_mov_b32_dpp v%d, v%d row_shl:1 row_mask:0xf bank_mask:0xf bound_ctrl:0" % (196 + r_, ACCB + r_))
    e("s_nop 3")
    for t in range(8):
        nxt_ = ACCB + 4 * (t + 1) if t < 7 else 196
        for hh in (0, 2):
            pk("v_pk_add_f32", ACCA + 4 * t + hh, ACCC + 4 * t + hh, nxt_ + hh)
        for hh in (0, 2):
            pk("v_pk_add_f32", ACCB + 4 * t + hh, ACCB + 4 * t + hh, ACCC + 4 * t + hh)
    vS, vM, vPV, vT = ACCC, ACCC + 4, ACCC + 8, ACCC + 12
    for r_ in range(4):
        e("v_mov_b32_dpp v%d, v%d row_newbcast:0 row_mask:0xf bank_mask:0xf" % (vPV + r_, ACCB + r_))
    fill = ["v_mov_b32 v%d, 0" % (vS + r_) for r_ in range(8)]
    for t in range(8):
        tt = vT + 4 * (t & 1)
        fill += ["v_sub_f32 v%d, v%d, v%d" % (tt + r_, ACCB + 4 * t + r_, vPV + r_) for r_ in range(4)]
        fill += ["v_add_f32 v%d, v%d, v%d" % (vS + r_, vS + r_, tt + r_) for r_ in range(4)]
        fill += ["v_fmac_f32 v%d, v%d, v%d" % (vM + r_, tt + r_, tt + r_) for r_ in range(4)]
    stamp()
    e("s_mov_b32 s%d, 0" % sCC)

    def pre(j):
        e("s_add_u32 s%d, s%d, %d" % (sSQ, sSQ, SEQ))
        e("s_cmp_ge_u32 s%d, %d" % (sSQ, 3 * SEQ))
        e("s_cselect_b32 s%d, 0, s%d" % (sSQ, sSQ))
        s_ = vXD[(j + 1) & 1]
        e("v_add_u32 v%d, s%d, v%d" % (s_[0], sSQ, vX[0]))
        e("v_add_u32 v%d, s%d, v%d" % (s_[1], sSQ, vX[1]))

    e.c("pass2 first stage (peeled, carries the statistics of the even rows)")
    qsave2 = list(q.q)
    stage(P2[0], P2[1], pre_last=lambda: pre(0), fill=fill)
    for f_ in fill:
        e(f_)
    e("s_branch L_p2_s1")
    q.q = qsave2
    e.label("L_p2")
    for j in range(4):
        e.c("pass2 stage %d" % j)
        if j == 1:
            e.label("L_p2_s1")
        stage(P2[j], P2[(j + 1) % 4], pre_last=lambda j=j: pre(j))
    signal("L_nosig2", True)
    itstamp(9)
    e("s_add_u32 s%d, s%d, 1" % (sCC, sCC))
    e("s_cmp_lt_u32 s%d, 4" % sCC)
    e("s_cbranch_scc1 L_p2")

    vP = WIN + 20
    vGF, vBF = WIN + 36, WIN + 40
    vCA, vCB = WIN + 44, WIN + 48
    vK0, vK1, vONE = WIN + 52, WIN + 54, WIN + 56
    vZ = WIN
    vN1 = 17

    def masks():
        e("s_cmp_eq_u32 s%d, 31" % sST_)
        e("s_cselect_b32 s%d, %d, 16" % (sA, LAST_VALID // 16))
        e("s_cselect_b32 s%d, %d, 15" % (sBB, LAST_VALID // 16))
        e("s_mov_b32 s%d, 0x%08x" % (sRN, f32(1.0 / TROWS)))
        e("s_cselect_b32 s%d, 0x%08x, s%d" % (sRN, f32(1.0 / LAST_VALID), sRN))
        e("v_cmp_gt_u32 s[%d:%d], s%d, v%d" % (sMF, sMF + 1, sA, vR))
        e("v_cmp_gt_u32 s[%d:%d], s%d, v%d" % (sMP, sMP + 1, sBB, vR))

    assert LAST_VALID % 16 == 0 and TROWS == 255

    def dpp_reduce(base, n):
        for sh in (8, 4, 2, 1):
            for i in range(n):
                e("v_add_f32_dpp v%d, v%d, v%d row_ror:%d row_mask:0xf bank_mask:0xf" % (base + i, base + i, base + i, sh))

    FLAG = 40960
    MAGIC = 0x5a5a1234
    c0 = -2.0 * math.log2(math.e) * math.sqrt(2.0 / math.pi)
    c1 = c0 * 0.044715

    def out_setup():
        e("s_mul_i32 s%d, s%d, %d" % (sOB, sB, L * 512))
        e("s_mul_i32 s%d, s%d, %d" % (sT1, sST_, TROWS * 512))
        e("s_add_u32 s%d, s%d, s%d" % (sOB, sOB, sT1))
        e("s_add_u32 s%d, s%d, s%d" % (sOB, sOB, sN2))
        e("s_lshl_b32 s%d, s%d, 5" % (sT1, sWAVE))
        e("s_add_u32 s%d, s%d, s%d" % (sOB, sOB, sT1))
        e("v_lshlrev_b32 v4, 13, v%d" % vR)
        e("v_lshlrev_b32 v3, 3, v%d" % vG)
        e("v_add_u32 v4, v4, v3")
        for k in (0, 1):
            e("v_mov_b32 v%d, 0x%08x" % (vK0 + k, f32(c0)))
            e("v_mov_b32 v%d, 0x%08x" % (vK1 + k, f32(c1)))
            e("v_mov_b32 v%d, 1.0" % (vONE + k))
        e("s_lshl_b32 s%d, s%d, 12" % (sT0, sWAVE))
        e("s_add_u32 s%d, s%d, %d" % (sT0, sT0, FLAG))
        e("v_lshlrev_b32 v2, 4, v0")
        e("v_add_u32 v2, s%d, v2" % sT0)
        e("v_mov_b32 v6, s%d" % sT0)

    def sweep():
        e("buffer_load_dwordx4 v[%d:%d], v1, s[%d:%d], s%d offen sc1" % (vP, vP + 3, SP, SP + 3, sPB))
        e("buffer_load_dwordx4 v[%d:%d], v1, s[%d:%d], s%d offen offset:64 sc1" % (vP + 4, vP + 7, SP, SP + 3, sPB))
        e("buffer_load_dwordx4 v[%d:%d], v1, s[%d:%d], s%d offen offset:2048 sc1" % (vP + 8, vP + 11, SP, SP + 3, sPB))
        e("buffer_load_dwordx4 v[%d:%d], v1, s[%d:%d], s%d offen offset:2112 sc1" % (vP + 12, vP + 15, SP, SP + 3, sPB))

    e.c("epilogue")
    e("s_waitcnt lgkmcnt(0) vmcnt(0)")
    stamp()
    masks()
    e("v_lshlrev_b32 v5, 4, v0")
    e("s_lshl_b32 s%d, s%d, 13" % (sT0, sWAVE))
    e("v_add_u32 v5, s%d, v5" % sT0)
    for t in range(8):
        e("ds_write_b128 v5, v[%d:%d] offset:%d" % (ACCB + 4 * t, ACCB + 4 * t + 3, t * 1024))
    for t in range(8):
        if t == 7:
            e("s_mov_b64 exec, s[%d:%d]" % (sMP, sMP + 1))
        tt = vT + 4 * (t & 1)
        for hh in (0, 2):
            pk("v_pk_add_f32", tt + hh, ACCA + 4 * t + hh, vPV + hh, mods=NEG)
        for hh in (0, 2):
            pk("v_pk_add_f32", vS + hh, vS + hh, tt + hh)
            pk("v_pk_fma_f32", vM + hh, tt + hh, tt + hh, vM + hh)
    e("s_mov_b64 exec, -1")
    for r_ in range(8):
        e("v_cndmask_b32 v%d, 0, v%d, s[%d:%d]" % (vS + r_, vS + r_, sMF, sMF + 1))
    dpp_reduce(vS, 8)
    for r_ in range(4):
        e("v_mul_f32 v%d, s%d, v%d" % (vT + r_, sRN, vS + r_))
    for r_ in range(4):
        e("v_fma_f32 v%d, -v%d, v%d, v%d" % (vM + r_, vT + r_, vS + r_, vM + r_))
        e("v_add_f32 v%d, v%d, v%d" % (vS + r_, vPV + r_, vT + r_))
    for r_ in range(4):
        e("v_max_f32 v%d, 0, v%d" % (vM + r_, vM + r_))
    for r_ in range(8):
        e("v_or_b32 v%d, 1, v%d" % (vS + r_, vS + r_))
    e("v_cmp_eq_u32 vcc, 0, v%d" % vR)
    e("s_and_saveexec_b64 s[%d:%d], vcc" % (sC0, sC0 + 1))
    e("buffer_store_dwordx4 v[%d:%d], v%d, s[%d:%d], s%d offen sc1" % (vS, vS + 3, vPO, SP, SP + 3, sSL))
    e("buffer_store_dwordx4 v[%d:%d], v%d, s[%d:%d], s%d offen offset:64 sc1" % (vM, vM + 3, vPO, SP, SP + 3, sSL))
    e("s_mov_b64 exec, -1")
    e("v_lshlrev_b32 v1, 7, v%d" % vR)
    e("v_add_u32 v1, v1, v%d" % vPO)
    sweep()
    stamp()
    out_setup()
    e("s_add_u32 s%d, s%d, 512" % (sOB, sOB))
    e("v_mov_b32 v3, 0")
    e("ds_write_b32 v6, v3 offset:2048")
    e("s_waitcnt lgkmcnt(0)")
    e("s_barrier")
    e("v_mov_b32 v%d, 0x%08x" % (vN1, f32(float(TROWS))))
    e("v_mov_b32 v3, 0x%08x" % f32(float(LAST_VALID)))
    e("v_cmp_eq_u32 vcc, 15, v%d" % vR)
    e("v_lshlrev_b32 v%d, 16, v%d" % (vGF + 0, vGAM))
    e("v_and_b32 v%d, 0xffff0000, v%d" % (vGF + 1, vGAM))
    e("v_cndmask_b32 v%d, v%d, v3, vcc" % (vN1, vN1))
    e("v_lshlrev_b32 v%d, 16, v%d" % (vGF + 2, vGAM + 1))
    e("v_and_b32 v%d, 0xffff0000, v%d" % (vGF + 3, vGAM + 1))
    e("v_lshlrev_b32 v%d, 16, v%d" % (vBF + 0, vBET))
    e("v_and_b32 v%d, 0xffff0000, v%d" % (vBF + 1, vBET))
    e("v_lshlrev_b32 v%d, 16, v%d" % (vBF + 2, vBET + 1))
    e("v_and_b32 v%d, 0xffff0000, v%d" % (vBF + 3, vBET + 1))
    sOW0, sOW1 = 56, 58
    e("s_and_b32 s%d, s%d, 15" % (sT0, sST_))
    e("v_cmp_eq_u32 s[%d:%d], s%d, v%d" % (sOW0, sOW0 + 1, sT0, vR))
    e("s_cmp_ge_u32 s%d, 16" % sST_)
    e("s_cselect_b64 s[%d:%d], s[%d:%d], 0" % (sOW1, sOW1 + 1, sOW0, sOW0 + 1))
    e("s_cselect_b64 s[%d:%d], 0, s[%d:%d]" % (sOW0, sOW0 + 1, sOW0, sOW0 + 1))
    e("s_mov_b32 s%d, 0" % sCNT)
    e("s_branch L_poll_chk")
    e.label("L_poll")
    sweep()
    e.label("L_poll_chk")
    e("s_add_u32 s%d, s%d, 1" % (sCNT, sCNT))
    e("s_waitcnt vmcnt(0)")
    for i in range(8):
        e("v_cndmask_b32 v%d, v%d, v%d, s[%d:%d]" % (vP + i, vP + i, vS + i, sOW0, sOW0 + 1))
        e("v_cndmask_b32 v%d, v%d, v%d, s[%d:%d]" % (vP + 8 + i, vP + 8 + i, vS + i, sOW1, sOW1 + 1))
    e("v_and_b32 v3, v%d, v%d" % (vP, vP + 1))
    for i in range(2, 16, 2):
        e("v_and_b32 v5, v%d, v%d" % (vP + i, vP + i + 1))
        e("v_and_b32 v3, v3, v5")
    e("v_and_b32 v3, 1, v3")
    e("v_cmp_eq_u32 vcc, 0, v3")
    e("s_cmp_ge_u32 s%d, 0x200000" % sCNT)
    e("s_cbranch_scc1 L_poll_done")
    e("s_cbranch_vccnz L_poll")
    e.label("L_poll_done")
    stamp()
    e("s_mov_b32 s%d, 0x%08x" % (sT1, f32(float(TROWS))))
    e("s_mov_b32 s%d, 0x%08x" % (sT2, f32(1.0 / L)))
    for r_ in range(4):
        e("v_mul_f32 v%d, s%d, v%d" % (vS + r_, sT1, vP + r_))
    for r_ in range(4):
        e("v_fmac_f32 v%d, v%d, v%d" % (vS + r_, vN1, vP + 8 + r_))
    for r_ in range(4):
        e("v_add_f32 v%d, v%d, v%d" % (vM + r_, vP + 4 + r_, vP + 12 + r_))
    dpp_reduce(vS, 4)
    for r_ in range(4):
        e("v_mul_f32 v%d, s%d, v%d" % (vS + r_, sT2, vS + r_))
    for r_ in range(4):
        e("v_sub_f32 v%d, v%d, v%d" % (vT + r_, vP + r_, vS + r_))
        e("v_sub_f32 v%d, v%d, v%d" % (vT + 4 + r_, vP + 8 + r_, vS + r_))
    for r_ in range(4):
        e("v_mul_f32 v%d, v%d, v%d" % (vT + r_, vT + r_, vT + r_))
        e("v_mul_f32 v%d, v%d, v%d" % (vT + 4 + r_, vT + 4 + r_, vT + 4 + r_))
    for r_ in range(4):
        e("v_fmac_f32 v%d, s%d, v%d" % (vM + r_, sT1, vT + r_))
    for r_ in range(4):
        e("v_fmac_f32 v%d, v%d, v%d" % (vM + r_, vN1, vT + 4 + r_))
    e("s_nop 0")
    dpp_reduce(vM, 4)
    e("v_mov_b32 v3, 0x%08x" % f32(1e-5))
    for r_ in range(4):
        e("v_fma_f32 v%d, v%d, s%d, v3" % (vM + r_, vM + r_, sT2))
    for r_ in range(4):
        e("v_rsq_f32 v%d, v%d" % (vM + r_, vM + r_))
    e("s_nop 0")
    for r_ in range(4):
        e("v_mul_f32 v%d, v%d, v%d" % (vCA + r_, vM + r_, vGF + r_))
    for r_ in range(4):
        e("v_fma_f32 v%d, -v%d, v%d, v%d" % (vCB + r_, vS + r_, vCA + r_, vBF + r_))
    e("ds_write_b128 v2, v[%d:%d]" % (vCA, vCA + 3))
    e("ds_write_b128 v2, v[%d:%d] offset:1024" % (vCB, vCB + 3))
    e("v_mov_b32 v3, 0x%08x" % MAGIC)
    e("ds_write_b32 v6, v3 offset:2048")
    e.label("L_final")
    e("s_add_u32 s%d, s%d, 4096" % (sT1, sOB))
    e("s_mov_b64 exec, s[%d:%d]" % (sMF, sMF + 1))
    for t in range(8):
        y = ACCA + 4 * t
        z = vZ + 8 * (t % 2)
        o = z + 4
        if t == 7:
            e("s_mov_b64 exec, s[%d:%d]" % (sMP, sMP + 1))
        if not DEBUG_H:
            for hh in (0, 2):
                pk("v_pk_fma_f32", y + hh, y + hh, vCA + hh, vCB + hh)
            for hh in (0, 2):
                pk("v_pk_mul_f32", z + hh, y + hh, y + hh)
            for hh in (0, 2):
                pk("v_pk_fma_f32", z + hh, z + hh, vK1, vK0)
            for hh in (0, 2):
                pk("v_pk_mul_f32", z + hh, z + hh, y + hh)
            for r_ in range(4):
                e("v_exp_f32 v%d, v%d" % (z + r_, z + r_))
            for hh in (0, 2):
                pk("v_pk_add_f32", z + hh, z + hh, vONE)
            for r_ in range(4):
                e("v_rcp_f32 v%d, v%d" % (z + r_, z + r_))
            for hh in (0, 2):
                pk("v_pk_mul_f32", y + hh, y + hh, z + hh)
        e("v_cvt_pk_bf16_f32 v%d, v%d, v%d" % (o, y, y + 1))
        e("v_cvt_pk_bf16_f32 v%d, v%d, v%d" % (o + 1, y + 2, y + 3))
        sb = sOB if t < 4 else sT1
        e("buffer_store_dwordx2 v[%d:%d], v4, s[%d:%d], s%d offen offset:%d" % (o, o + 1, SO, SO + 3, sb, (t % 4) * 1024))
    e("s_mov_b64 exec, -1")
    if STAMP:
        e("s_cmp_eq_u32 s%d, 1" % sROLE)
        e("s_cbranch_scc1 L_end")
        stamp()
        e("s_waitcnt vmcnt(0)")
        stamp()
        e("s_lshl_b32 s%d, s2, 2" % sT0)
        e("s_add_u32 s%d, s%d, s%d" % (sT0, sT0, sWAVE))
        e("s_lshl_b32 s%d, s%d, 7" % (sT0, sT0))
        e("s_add_u32 s%d, s%d, 0x%x" % (sT0, sT0, STAMP_OFF))
        e("v_mov_b32 v1, s%d" % sT0)
        e("s_mov_b64 exec, 1")
        for i in range(8):
            e("v_mov_b32 v2, s%d" % (sST + 2 * i))
            e("v_mov_b32 v3, s%d" % (sST + 2 * i + 1))
            e("global_store_dwordx2 v1, v[2:3], s[16:17] offset:%d" % (8 * i))
    e("s_endpgm")

    idx_l = len(e.lines)
    vLW, vXO, vSL, vSO = 1, 2, 3, 5
    RA, UT, RS = 120, 144, 160
    vSI = 4
    sMW, sMX, sWC, sX1, sS2, sSI, sSO_ = sL0, sL1, sL2, sL3, sL4, sL5, sL6
    sG2, sSB, sSQ2, sMS, sID = sA, sBB, sNV, sRN, sOB
    sXB0, sSB0 = sLH, sDT
    e("s_setprio %d" % opts.get("lprio", 0))
    TAPO = [0, 2, 1, 3]

    def late_setup():
        more_srds()
        e("v_lshlrev_b32 v%d, 4, v0" % vSL)
        e("v_lshrrev_b32 v22, 2, v21")
        e("v_mul_u32_u24 v22, %d, v22" % S_CC)
        e("v_lshlrev_b32 v23, 6, v20")
        e("v_add_u32 v22, v22, v23")
        e("v_and_b32 v23, 3, v21")
        e("v_lshlrev_b32 v23, 4, v23")
        e("v_add_u32 v%d, v22, v23" % vSO)
        e("s_mul_i32 s%d, s%d, %d" % (sSB, sGM, S_GM))
        e("s_lshl_b32 s%d, s%d, 10" % (sT0, sWAVE))
        e("s_add_u32 s%d, s%d, s%d" % (sS2, sSB, sT0))
        e("s_lshl_b32 s%d, s%d, 2" % (sID, sWAVE))
        e("s_add_u32 s%d, s%d, s%d" % (sID, sID, sNT))
        e("s_and_b32 s%d, s%d, 1" % (sT0, sID))
        e("s_lshl_b32 s%d, s%d, 5" % (sT1, sT0))
        e("v_xor_b32 v6, s%d, v%d" % (sT1, vSO))
        e("s_lshl_b32 s%d, s%d, 14" % (sT1, sID))
        e("s_add_u32 s%d, s%d, s%d" % (sXB0, sXB, sT1))
        e("s_lshl_b32 s%d, s%d, 9" % (sT1, sID))
        e("s_add_u32 s%d, s%d, s%d" % (sSB0, sSB, sT1))
        e("s_lshr_b32 s%d, s%d, 1" % (sID, sID))
        e("s_lshl_b32 s%d, s%d, 9" % (sSI, sT0))
        e("s_add_u32 s%d, s%d, s%d" % (sSI, sSI, sXB))
        e("s_mul_i32 s%d, s%d, %d" % (sSO_, sT0, S_P))
        e("s_add_u32 s%d, s%d, s%d" % (sSO_, sSO_, sSB))
        e("s_mov_b32 s%d, s%d" % (sG2, sN2))
        e("s_mov_b32 s%d, 0" % sSQ2)
        e("s_mul_i32 s%d, s%d, %d" % (sMS, sWAVE, XBLK))
        e("v_mov_b32 v7, 0")
        e("s_lshl_b32 s%d, s%d, 7" % (sCC, sGM))
        e("s_add_u32 s%d, s%d, %d" % (sCC, sCC, FL_OFF))

    def stage_desc(m):
        return P1[m % 8] if m < 32 else P2[(m - 32) % 4]

    last_use = {}
    wsched = {}
    LEAD = 3
    for m in range(48):
        st = stage_desc(m)
        for i in range(st["n"]):
            sl = st["slots"][i]
            if sl == 31 and sl not in last_use:
                last_use[sl] = 31
            free = last_use[sl] + 1 if sl in last_use else -1
            at = max(free, m - LEAD, -1)
            wsched.setdefault(at, []).append((m, i))
            last_use[sl] = m

    def it_wt(items, m, i, base1, base2):
        st = stage_desc(m)
        items.append(("t", "s_add_u32 m0, s%d, %d" % (sMW, wslot_addr(st["slots"][i]))))
        if m < 32:
            C = m // 8
            off = (C - base1) * 32768 + st["kh"] * 16384 + (4 * i + TAPO[st["j"]]) * 131072
            items.append(("t", "s_add_u32 s%d, s%d, %d" % (sT0, sWC, off)))
            items.append(("v", ("W", m), "buffer_load_dwordx4 v%d, s[%d:%d], s%d offen lds" % (vLW, SW, SW + 3, sT0)))
        else:
            cc, p = divmod(m - 32, 2)
            off = (cc - base2) * 16384 + (p * 8 + i) * 131072
            items.append(("t", "s_add_u32 s%d, s%d, %d" % (sT0, sG2, off)))
            items.append(("v", ("W", m), "buffer_load_dwordx4 v%d, s[%d:%d], s%d offen sc1 lds" % (vLW, SG, SG + 3, sT0)))

    def it_x1(items, sq, base1):
        C, j = divmod(sq, 4)
        rel = TAPO[j] * 512 + (C - base1) * 128
        buf = (j & 1) * YBUF
        tag = ("X", 2 * sq)
        for mm in range(4):
            items.append(("t", "s_add_u32 m0, s%d, %d" % (sMX, buf + 4 * mm * YBLK)))
            items.append(("t", "s_add_u32 s%d, s%d, %d" % (sT0, sX1, mm * 65536 + rel)))
            items.append(("v", tag, "buffer_load_dwordx4 v%d, s[%d:%d], s%d offen lds" % (vXO, SX, SX + 3, sT0)))
        items.append(("t", "s_mov_b32 m0, %d" % (buf + 16 * YBLK)))
        items.append(("t", "s_add_u32 s%d, s%d, %d" % (sT0, sXB, 16 * 16384 + rel)))
        items.append(("t", "s_mov_b32 exec_hi, 0xffffff"))
        items.append(("v", tag, "buffer_load_dwordx4 v%d, s[%d:%d], s%d offen lds" % (vXO, SX, SX + 3, sT0)))
        items.append(("t", "s_mov_b32 exec_hi, -1"))

    def it_x2(items, m, base2, part="all", sq_back=False):
        if m > 47:
            return
        cc, p = divmod(m - 32, 2)
        rel = p * S_P + (cc - base2) * S_CC
        if part in ("all", "main"):
            items.append(("t", "s_add_u32 s%d, s%d, s%d" % (sT1, sMS, sSQ2)))
            for ap in range(2):
                items.append(("t", "s_add_u32 m0, s%d, %d" % (sT1, ap * 4 * XBLK)))
                items.append(("t", "s_add_u32 s%d, s%d, %d" % (sT0, sS2, ap * 4096 + rel)))
                items.append(("v", ("X", m), "buffer_load_dwordx4 v%d, s[%d:%d], s%d offen sc1 lds" % (vSL, SS, SS + 3, sT0)))
        if part in ("all", "halo"):
            items.append(("t", "s_add_u32 m0, s%d, %d" % (sSQ2, 8 * XBLK)))
            items.append(("t", "s_add_u32 s%d, s%d, %d" % (sT0, sSB, 8 * 1024 + rel)))
            items.append(("t", "s_mov_b64 exec, 0xfffffff"))
            items.append(("v", ("X", m), "buffer_load_dwordx4 v%d, s[%d:%d], s%d offen sc1 lds" % (vSL, SS, SS + 3, sT0)))
            items.append(("t", "s_mov_b64 exec, -1"))
            items.append(("t", "s_add_u32 s%d, s%d, %d" % (sSQ2, sSQ2, SEQ)))
            items.append(("t", "s_cmp_ge_u32 s%d, %d" % (sSQ2, 3 * SEQ)))
            items.append(("t", "s_cselect_b32 s%d, 0, s%d" % (sSQ2, sSQ2)))

    def it_sload(items, C, kind):
        ra, rb = RA + 8 * kind, RA + 8 * kind + 4
        if kind < 2:
            items.append(("t", "s_add_u32 s%d, s%d, %d" % (sT0, sXB0, C * 128 + kind * 512)))
            for (r_, o_) in ((ra, 1024), (rb, 2048)):
                items.append(("v", ("SL", C, kind), "buffer_load_dwordx4 v[%d:%d], v%d, s[%d:%d], s%d offen offset:%d" %
                              (r_, r_ + 3, vXO, SX, SX + 3, sT0, o_)))
        else:
            items.append(("t", "s_cmp_lg_u32 s%d, %d" % (sID, C)))
            items.append(("t", "s_cbranch_scc1 L_hl%d" % C))
            items.append(("t", "s_add_u32 s%d, s%d, %d" % (sT0, sSI, 16 * 16384 + C * 128)))
            for (r_, o_) in ((ra, 1024), (rb, 2048)):
                items.append(("t", "buffer_load_dwordx4 v[%d:%d], v%d, s[%d:%d], s%d offen offset:%d" %
                              (r_, r_ + 3, vXO, SX, SX + 3, sT0, o_)))
            items.append(("lab", "L_hl%d" % C))
            items.append(("mark", ("SL", C, kind)))

    def it_sfin(items, C, kind):
        Tt = lambda s_: items.append(("t", s_))
        ra, rb = RA + 8 * kind, RA + 8 * kind + 4
        if kind == 2:
            Tt("s_cmp_lg_u32 s%d, %d" % (sID, C))
            Tt("s_cbranch_scc1 L_hf%d" % C)
            items.append(("wm", ("SL", C, kind)))
        else:
            items.append(("w", [("SL", C, kind)]))
        for k in range(4):
            u = UT + 4 * k
            Tt("v_lshlrev_b32 v%d, 16, v%d" % (u, ra + k))
            Tt("v_and_b32 v%d, 0xffff0000, v%d" % (u + 1, ra + k))
            Tt("v_lshlrev_b32 v%d, 16, v%d" % (u + 2, rb + k))
            Tt("v_and_b32 v%d, 0xffff0000, v%d" % (u + 3, rb + k))
        for k in range(4):
            u = UT + 4 * k
            Tt("v_pk_add_f32 v[%d:%d], v[%d:%d], v[%d:%d] neg_lo:[0,1] neg_hi:[0,1]" % (u, u + 1, u, u + 1, u + 2, u + 3))
        for k in range(4):
            u = UT + 4 * k
            Tt("v_cvt_pk_bf16_f32 v%d, v%d, v%d" % (RS + 4 * kind + k, u, u + 1))
        if kind < 2:
            Tt("s_add_u32 s%d, s%d, %d" % (sT0, sSB0, kind * S_P + 2 * C * S_CC))
            items.append(("v", ("SS", C), "buffer_store_dwordx4 v[%d:%d], v6, s[%d:%d], s%d offen sc1" %
                          (RS + 4 * kind, RS + 4 * kind + 3, SS, SS + 3, sT0)))
        else:
            Tt("s_add_u32 s%d, s%d, %d" % (sT0, sSO_, 2 * C * S_CC + 8192))
            Tt("buffer_store_dwordx4 v[%d:%d], v%d, s[%d:%d], s%d offen sc1" % (RS + 8, RS + 11, vSO, SS, SS + 3, sT0))
            items.append(("lab", "L_hf%d" % C))
            items.append(("mark", ("SH", C)))

    SD = opts.get("sd", 0)
    s_load_at, s_fin_at = {}, {}
    for C in range(4):
        for kind, off in ((0, 2 + SD), (1, 6), (2, 7)):
            s_load_at.setdefault(8 * C + off, []).append((C, kind))
            s_fin_at.setdefault(8 * C + off + 2, []).append((C, kind))

    def barrier(items, n):
        if n <= 47:
            need = [("W", n), ("X", n)]
        else:
            need = "all"
        if n >= 12 and (n - 12) % 8 == 0 and (n - 12) // 8 < 4:
            items.append(("wm", ("SH", (n - 12) // 8)))
        items.append(("w", need))
        items.append(("t", "s_barrier"))

    first_p2 = min(n for n, l in wsched.items() if any(m >= 32 for m, i in l))
    poll_at = {first_p2: 0, 34: 1, 38: 2, 42: 3}

    sFP = sCC

    def poll_issue(items, C):
        if C == 0:
            items.append(("v", ("PG", 0), "global_load_dword v21, v7, s[14:15] sc1"))
        else:
            items.append(("v", ("PL", C), "buffer_load_dwordx4 v[24:27], v7, s[%d:%d], s%d offen offset:%d sc1" % (SP, SP + 3, sFP, 16 * C)))

    def spin(items, lab, first_wait, load, reduce_, target):
        items.append(first_wait)
        items.append(("t", "s_mov_b32 s%d, 0" % sCNT))
        items.append(("t", "s_branch %s_c" % lab))
        items.append(("lab", lab))
        items.append(("t", load))
        items.append(("t", "s_waitcnt vmcnt(0)"))
        items.append(("lab", lab + "_c"))
        for r_ in reduce_:
            items.append(("t", r_))
        items.append(("t", "s_add_u32 s%d, s%d, 1" % (sCNT, sCNT)))
        items.append(("t", "v_readfirstlane_b32 s%d, v21" % sT0))
        items.append(("t", "s_cmp_ge_u32 s%d, 0x200000" % sCNT))
        items.append(("t", "s_cbranch_scc1 %s_d" % lab))
        items.append(("t", "s_cmp_lt_u32 s%d, %d" % (sT0, target)))
        items.append(("t", "s_cbranch_scc1 %s" % lab))
        items.append(("lab", lab + "_d"))

    def poll(items, C):
        fl = "buffer_load_dwordx4 v[24:27], v7, s[%d:%d], s%d offen offset:%d sc1" % (SP, SP + 3, sFP, 16 * C)
        red = ["v_and_b32 v21, v24, v25", "v_and_b32 v22, v26, v27", "v_and_b32 v21, v21, v22"]
        if C == 0:
            spin(items, "L_gpoll", ("w", [("PG", 0)]), "global_load_dword v21, v7, s[14:15] sc1", [], 256)
        else:
            spin(items, "L_fpoll%d" % C, ("w", [("PL", C)]), fl, red, 1)

    def slot_items(n, base1, base2):
        items = []
        if n in poll_at:
            poll(items, poll_at[n])
        if n + 1 in poll_at:
            poll_issue(items, poll_at[n + 1])
        for (C, kind) in s_load_at.get(n, []):
            it_sload(items, C, kind)
        if n % 2 == 0 and n // 2 + 1 < 16 and n >= 0:
            it_x1(items, n // 2 + 1, base1)
        if n == 30:
            it_x2(items, 32, base2)
        elif n == 31:
            it_x2(items, 33, base2, part="main")
        elif n == 32:
            it_x2(items, 33, base2, part="halo")
            it_x2(items, 34, base2)
        elif n > 32:
            it_x2(items, n + 2, base2)
        for (m, i) in wsched.get(n, []):
            it_wt(items, m, i, base1, base2)
        for (C, kind) in s_fin_at.get(n, []):
            it_sfin(items, C, kind)
        barrier(items, n + 1)
        return items

    pro = []
    it_x1(pro, 0, 0)
    assert wsched[-1] == [(m, i) for m in range(3) for i in range(8)]
    for m in range(3):
        st = P1[m]
        assert st["slots"] == list(range(8 * m, 8 * m + 8))
        pro.append(("t", "s_add_u32 m0, s%d, %d" % (sMW, wslot_addr(8 * m))))
        pro.append(("t", "s_add_u32 s%d, s%d, %d" % (sT0, sWC, st["kh"] * 16384 + TAPO[st["j"]] * 131072)))
        pro.append(("t", "s_mov_b32 s%d, 0" % sT1))
        pro.append(("lab", "L_pw%d" % m))
        pro.append(("t", "buffer_load_dwordx4 v%d, s[%d:%d], s%d offen lds" % (vLW, SW, SW + 3, sT0)))
        pro.append(("t", "s_add_u32 m0, m0, %d" % WSTEP))
        pro.append(("t", "s_add_u32 s%d, s%d, %d" % (sT0, sT0, 4 * 131072)))
        pro.append(("t", "s_add_u32 s%d, s%d, 1" % (sT1, sT1)))
        pro.append(("t", "s_cmp_lt_u32 s%d, 8" % sT1))
        pro.append(("t", "s_cbranch_scc1 L_pw%d" % m))
        for i in range(8):
            pro.append(("vq", ("W", m)))
    pro.append(("late",))
    barrier(pro, 0)
    blocks = [pro]
    for n in range(48):
        blocks.append(slot_items(n, 0, 0))
    qv = []
    for items in blocks:
        for k, itx in enumerate(items):
            if itx[0] in ("v", "vq"):
                qv.append(itx[1])
            elif itx[0] == "mark":
                qv.append(("M",) + itx[1])
            elif itx[0] in ("w", "wm"):
                tags = itx[1] if itx[0] == "w" else [("M",) + itx[1]]
                if tags == "all":
                    n, idx = 0, len(qv) - 1
                else:
                    idx = -1
                    for i, t in enumerate(qv):
                        if t in tags:
                            idx = i
                    n = sum(1 for t in qv[idx + 1:] if t[0] != "M") if idx >= 0 else 63
                n = min(n, 63)
                if itx[0] == "w" or itx[1][0] == "SH":
                    if idx >= 0:
                        qv = qv[idx + 1:]
                items[k] = ("wn", n)

    def merge(lists):
        base = lists[0]
        out = []
        for k, itx in enumerate(base):
            if itx[0] == "wn":
                out.append(("wn", min(l[k][1] for l in lists)))
            else:
                for l in lists:
                    assert l[k][0] == itx[0] and l[k][-1] == itx[-1], (l[k], itx)
                out.append(itx)
        return out

    def put(items):
        for itx in items:
            if itx[0] == "t":
                e(itx[1])
            elif itx[0] == "v":
                e(itx[2])
            elif itx[0] == "lab":
                e.label(itx[1])
            elif itx[0] == "drain":
                e("s_waitcnt vmcnt(0)")
            elif itx[0] == "wn":
                e("s_waitcnt vmcnt(%d)" % itx[1])
            elif itx[0] == "late":
                late_setup()

    for blk in blocks:
        put(blk)
    e.c("loader joins the epilogue: even rows of its partner")
    e("v_and_b32 v%d, 15, v0" % vR)
    e("v_lshrrev_b32 v%d, 4, v0" % vG)
    masks()
    out_setup()
    e("s_mov_b64 s[%d:%d], s[%d:%d]" % (sMP, sMP + 1, sMF, sMF + 1))
    e("v_lshlrev_b32 v5, 4, v0")
    e("s_lshl_b32 s%d, s%d, 13" % (sT0, sWAVE))
    e("v_add_u32 v5, s%d, v5" % sT0)
    e("s_mov_b32 s%d, 0" % sCNT)
    e("s_barrier")
    for t in range(8):
        e("ds_read_b128 v[%d:%d], v5 offset:%d" % (ACCA + 4 * t, ACCA + 4 * t + 3, t * 1024))
    e.label("L_mbox")
    e("ds_read_b32 v3, v6 offset:2048")
    e("s_add_u32 s%d, s%d, 1" % (sCNT, sCNT))
    e("s_waitcnt lgkmcnt(0)")
    e("v_readfirstlane_b32 s%d, v3" % sT0)
    e("s_cmp_ge_u32 s%d, 0x4000000" % sCNT)
    e("s_cbranch_scc1 L_mbox_d")
    e("s_cmp_lg_u32 s%d, 0x%08x" % (sT0, MAGIC))
    e("s_cbranch_scc1 L_mbox")
    e.label("L_mbox_d")
    e("ds_read_b128 v[%d:%d], v2" % (vCA, vCA + 3))
    e("ds_read_b128 v[%d:%d], v2 offset:1024" % (vCB, vCB + 3))
    e("s_waitcnt lgkmcnt(0)")
    e("s_branch L_final")
    idx_e = len(e.lines)
    e.lines = e.lines[:idx_c] + e.lines[idx_l:idx_e] + e.lines[idx_c:idx_l]
    e.label("L_end")
    e("s_endpgm")

    hdr = """; Kernarg layout for this problem (56 bytes, ptrs only, base s[0:1]):
;   offset   0: d_in[0] x  shape=(2, 16000, 256) dtype=bfloat16
;   offset   8: d_in[1] w  shape=(31, 256, 256) dtype=bfloat16
;   offset  16: d_in[2] gn_gamma  shape=(256,) dtype=bfloat16
;   offset  24: d_in[3] gn_beta  shape=(256,) dtype=bfloat16
;   offset  32: d_out     shape=(2, 7985, 256) dtype=bfloat16
;   offset  40: d_debug   256 bytes
;   offset  48: d_ws      workspace
; Generated by work/gen8.py (implicit-GEMM conv via 2-parallel fast FIR + fused group norm + GELU)
; @launch grid=(256,1,1) block=(512,1,1) lds=%d
.amdgcn_target "amdgcn-amd-amdhsa--gfx950"
.text
.globl %s_kernel
.p2align 8
.type %s_kernel,@function
%s_kernel:
""" % (LDS_TOTAL, NAME, NAME, NAME)
    ftr = """.section .rodata,"a"
.p2align 6
.amdhsa_kernel %s_kernel
  .amdhsa_next_free_vgpr 200
  .amdhsa_next_free_sgpr 100
  .amdhsa_accum_offset 200
  .amdhsa_group_segment_fixed_size 0
  .amdhsa_kernarg_size 56
  .amdhsa_user_sgpr_count 2
  .amdhsa_user_sgpr_kernarg_segment_ptr 1
  .amdhsa_system_sgpr_workgroup_id_x 1
.end_amdhsa_kernel
""" % NAME
    return hdr + e.text() + ftr


if __name__ == "__main__":
    opts = {}
    out = "cdna_kernels/%s.s" % NAME
    for a in sys.argv[1:]:
        if a.startswith("-o"):
            out = a[2:]
        elif "=" in a:
            k, v = a.split("=")
            opts[k] = int(v)
        else:
            opts[a] = True
    open(out, "w").write(gen(opts))
    print("wrote", out)
```

```python
import sys
import struct
import math

NAME = "standalone__self_sup_conv_stem_wavlm__speech"

B_, T, D, KT = 2, 16000, 256, 31
L = 7985
X_BYTES = B_ * T * D * 2
W_BYTES = KT * D * D * 2
OUT_BYTES = B_ * L * D * 2
TROWS = 255
LAST_VALID = L - 31 * TROWS

YBLK = 1056
YBUF = 16 * YBLK + 7 * 128
XBLK = 1088
SEQ = 8 * XBLK + 7 * 64
WBASE = 2 * YBUF
WSTEP = 4096
LDS_TOTAL = 163840
assert WBASE + 31 * WSTEP <= LDS_TOTAL and 3 * SEQ + WSTEP <= WBASE


def wslot_addr(n):
    return WBASE + n * WSTEP if n < 31 else 3 * SEQ


PART_BYTES = 32 * 4096
GS_OFF = 1 << 20
GS_BYTES = 16 * 131072
S_OFF = 4 << 20
S_CC = 144 * 64
S_P = 8 * S_CC
S_GM = 2 * S_P
S_BYTES = 64 * S_GM
STAMP_OFF = 16 << 20


def f32(x):
    return struct.unpack("<I", struct.pack("<f", x))[0]


class Emit:
    def __init__(self):
        self.lines = []

    def __call__(self, s):
        self.lines.append("    " + s)

    def label(self, s):
        self.lines.append(s + ":")

    def c(self, s):
        self.lines.append("    ; " + s)

    def text(self):
        return "\n".join(self.lines) + "\n"


def gen(opts):
    e = Emit()
    DEBUG_H = opts.get("debug_h", False)
    STAMP = opts.get("stamp", False)
    S0 = opts.get("s0", 1)
    GSL = opts.get("gsl", 0)
    SPLIT = opts.get("split", 1)

    SX, SW, SO, SP, SG, SS = 20, 24, 28, 32, 36, 40
    sWAVE, sNT, sGM, sB, sST_, sXB, sN2 = 44, 45, 46, 47, 48, 49, 50
    sT0, sT1, sT2 = 51, 52, 53
    sCC = 54
    sL0, sL1, sL2, sL3, sL4, sL5, sL6 = 55, 56, 57, 58, 59, 60, 61
    sMF, sMP = 62, 64
    sA, sBB, sNV = 66, 67, 68
    sOB, sCNT, sRN = 69, 70, 71
    sPB = 72
    sLH, sDT, sROLE = 73, 74, 75
    sC0 = 76
    sST = 78
    nstamp = [0]

    def stamp():
        if not STAMP:
            return
        i = nstamp[0]
        nstamp[0] += 1
        assert i < 8
        e("s_memtime s[94:95]")
        e("s_memrealtime s[96:97]")
        e("s_waitcnt lgkmcnt(0)")
        e("s_mov_b32 s%d, s94" % (sST + 2 * i))
        e("s_mov_b32 s%d, s96" % (sST + 2 * i + 1))

    vR, vG = 10, 11
    vGAM, vBET = 12, 14
    vPO = 16

    e.c("entry")
    e("s_cmp_ge_u32 s2, 256")
    e("s_cbranch_scc1 L_end")
    e("s_load_dwordx8 s[4:11], s[0:1], 0")
    e("s_load_dwordx4 s[12:15], s[0:1], 32")
    e("s_load_dwordx2 s[16:17], s[0:1], 48")
    e("v_lshrrev_b32 v1, 6, v0")
    e("v_mov_b32 v19, v0")
    e("v_and_b32 v0, 63, v0")
    e("s_and_b32 s%d, s2, 7" % sT0)
    e("v_readfirstlane_b32 s%d, v1" % sWAVE)
    e("s_lshr_b32 s%d, s2, 3" % sT1)
    e("s_and_b32 s%d, s%d, 3" % (sNT, sT1))
    e("s_lshr_b32 s%d, s%d, 2" % (sT1, sT1))
    e("s_lshl_b32 s%d, s%d, 3" % (sGM, sT0))
    e("s_add_u32 s%d, s%d, s%d" % (sGM, sGM, sT1))
    e("s_lshr_b32 s%d, s%d, 5" % (sB, sGM))
    e("s_lshr_b32 s%d, s%d, 2" % (sROLE, sWAVE))
    e("s_and_b32 s%d, s%d, 3" % (sWAVE, sWAVE))
    e("s_and_b32 s%d, s%d, 31" % (sST_, sGM))
    e("s_mul_i32 s%d, s%d, %d" % (sXB, sB, T * 512))
    e("s_mul_i32 s%d, s%d, %d" % (sT0, sST_, 2 * TROWS * 512))
    e("s_add_u32 s%d, s%d, s%d" % (sXB, sXB, sT0))
    e("s_lshl_b32 s%d, s%d, 7" % (sN2, sNT))
    vLW, vXO, vSL, vSO = 1, 2, 3, 5
    sMW, sMX, sWC, sX1, sS2, sSI, sSO_ = sL0, sL1, sL2, sL3, sL4, sL5, sL6
    e("v_lshrrev_b32 v20, 3, v0")
    e("v_and_b32 v21, 7, v0")
    e("v_lshlrev_b32 v22, 11, v20")
    e("v_lshlrev_b32 v23, 4, v21")
    e("v_add_u32 v%d, v22, v23" % vXO)
    e("s_lshl_b32 s%d, s%d, 14" % (sT0, sWAVE))
    e("s_add_u32 s%d, s%d, s%d" % (sX1, sXB, sT0))
    e("s_mul_i32 s%d, s%d, %d" % (sMX, sWAVE, YBLK))
    e("v_lshrrev_b32 v22, 1, v0")
    e("v_and_b32 v22, 3, v22")
    e("v_and_b32 v23, 1, v0")
    e("v_lshrrev_b32 v24, 1, v20")
    e("v_and_b32 v24, 1, v24")
    e("s_and_b32 s%d, s%d, 1" % (sT0, sWAVE))
    e("s_lshl_b32 s%d, s%d, 1" % (sT0, sT0))
    e("v_or_b32 v24, s%d, v24" % sT0)
    e("v_xor_b32 v22, v22, v24")
    e("v_lshlrev_b32 v24, 9, v20")
    e("v_lshlrev_b32 v22, 5, v22")
    e("v_lshlrev_b32 v23, 4, v23")
    e("v_add3_u32 v24, v24, v22, v23")
    e("s_lshl_b32 s%d, s%d, 12" % (sT0, sWAVE))
    e("v_add_u32 v%d, s%d, v24" % (vLW, sT0))
    e("s_lshl_b32 s%d, s%d, 10" % (sMW, sWAVE))
    e("s_mov_b32 s%d, s%d" % (sWC, sN2))
    e("s_mov_b32 s%d, 0" % sCC)

    e("s_waitcnt lgkmcnt(0)")
    for (srd, p, nbytes) in ((SX, 4, X_BYTES), (SW, 6, W_BYTES)):
        e("s_mov_b32 s%d, s%d" % (srd, p))
        e("s_and_b32 s%d, s%d, 0xffff" % (srd + 1, p + 1))
        e("s_mov_b32 s%d, %d" % (srd + 2, nbytes))
        e("s_mov_b32 s%d, 0x00020000" % (srd + 3))

    def more_srds():
        for (srd, p, nbytes) in ((SO, 12, OUT_BYTES), (SP, 16, PART_BYTES)):
            e("s_mov_b32 s%d, s%d" % (srd, p))
            e("s_and_b32 s%d, s%d, 0xffff" % (srd + 1, p + 1))
            e("s_mov_b32 s%d, %d" % (srd + 2, nbytes))
            e("s_mov_b32 s%d, 0x00020000" % (srd + 3))
        for (srd, off, nbytes) in ((SG, GS_OFF, GS_BYTES), (SS, S_OFF, S_BYTES)):
            e("s_add_u32 s%d, s16, %d" % (srd, off))
            e("s_addc_u32 s%d, s17, 0" % (srd + 1))
            e("s_and_b32 s%d, s%d, 0xffff" % (srd + 1, srd + 1))
            e("s_mov_b32 s%d, %d" % (srd + 2, nbytes))
            e("s_mov_b32 s%d, 0x00020000" % (srd + 3))

    def epi_setup():
        e("v_and_b32 v%d, 15, v0" % vR)
        e("v_lshrrev_b32 v%d, 4, v0" % vG)
        e("s_lshl_b32 s%d, s%d, 5" % (sT2, sWAVE))
        e("s_add_u32 s%d, s%d, s%d" % (sT2, sT2, sN2))
        e("v_lshlrev_b32 v17, 3, v%d" % vG)
        e("v_add_u32 v17, s%d, v17" % sT2)
        e("global_load_dwordx2 v[%d:%d], v17, s[8:9]" % (vGAM, vGAM + 1))
        e("global_load_dwordx2 v[%d:%d], v17, s[10:11]" % (vBET, vBET + 1))
        e("s_lshl_b32 s%d, s%d, 4" % (sPB, sB))
        e("s_lshl_b32 s%d, s%d, 2" % (sT2, sNT))
        e("s_add_u32 s%d, s%d, s%d" % (sPB, sPB, sT2))
        e("s_add_u32 s%d, s%d, s%d" % (sPB, sPB, sWAVE))
        e("s_lshl_b32 s%d, s%d, 12" % (sPB, sPB))
        e("v_lshlrev_b32 v%d, 4, v%d" % (vPO, vG))

    e("s_cmp_eq_u32 s%d, 0" % sROLE)
    e("s_cbranch_scc1 L_consumer")
    idx_c = len(e.lines)
    e.label("L_consumer")

    vX = [1, 2]
    vXD = [[3, 4], [5, 6]]
    vY = 195
    vW = [7, 8, 9]
    sSQ = sL5
    ACCB, ACCC, ACCA = 20, 52, 84
    WIN = 116
    WF = [176, 180, 184, 188]
    sG0, sG1, sGD, sSL = sL0, sL1, sL2, sL3
    e.c("consumer setup")
    stamp()
    if opts.get("cpf", 1):
        e("s_getpc_b64 s[%d:%d]" % (sMF, sMF + 1))
        e.label("L_pc")
        e("s_sub_u32 s%d, s%d, L_pc-%s_kernel" % (sMF, sMF, NAME))
        e("s_subb_u32 s%d, s%d, 0" % (sMF + 1, sMF + 1))
        e("v_lshlrev_b32 v194, 7, v19")
        e("v_min_u32 v194, L_end-%s_kernel, v194" % NAME)
        e("global_load_dword v193, v194, s[%d:%d]" % (sMF, sMF + 1))
    e("s_setprio %d" % opts.get("cprio", 2))
    more_srds()
    e("s_lshr_b32 s%d, s2, 4" % sT0)
    e("s_lshr_b32 s%d, s%d, 3" % (sT1, sT0))
    e("s_and_b32 s%d, s%d, 7" % (sT2, sT0))
    e("s_lshl_b32 s%d, s%d, 2" % (sT2, sT2))
    e("s_add_u32 s%d, s%d, s%d" % (sT2, sT2, sT1))
    e("s_lshl_b32 s%d, s%d, 17" % (sT2, sT2))
    e("s_and_b32 s%d, s2, 15" % sT1)
    e("s_lshl_b32 s%d, s%d, 13" % (sT1, sT1))
    e("s_add_u32 s%d, s%d, s%d" % (sG0, sT2, sT1))
    e("s_lshl_b32 s%d, s%d, 17" % (sT0, sT0))
    e("s_add_u32 s%d, s%d, s%d" % (sGD, sT0, sT1))
    e("s_add_u32 s%d, s%d, %d" % (sG1, sG0, 2 * 131072))
    e("v_lshlrev_b32 v18, 5, v19")
    g0, g1, gu = ACCA, ACCA + 8, ACCA + 16

    def gs_loads():
        e("buffer_load_dwordx4 v[%d:%d], v18, s[%d:%d], s%d offen" % (g0, g0 + 3, SW, SW + 3, sG0))
        e("buffer_load_dwordx4 v[%d:%d], v18, s[%d:%d], s%d offen offset:16" % (g0 + 4, g0 + 7, SW, SW + 3, sG0))
        e("buffer_load_dwordx4 v[%d:%d], v18, s[%d:%d], s%d offen" % (g1, g1 + 3, SW, SW + 3, sG1))
        e("buffer_load_dwordx4 v[%d:%d], v18, s[%d:%d], s%d offen offset:16" % (g1 + 4, g1 + 7, SW, SW + 3, sG1))

    if GSL == 0:
        gs_loads()
    epi_setup()
    e("s_lshl_b32 s%d, s%d, 7" % (sSL, sST_))
    e("s_add_u32 s%d, s%d, s%d" % (sSL, sSL, sPB))
    for i in range(64):
        e("v_mov_b32 v%d, 0" % (ACCB + i))
    for i in range(4):
        e("v_mov_b32 v%d, 0" % (196 + i))

    def clear_slot():
        e("v_cmp_eq_u32 vcc, 0, v%d" % vR)
        e("s_and_saveexec_b64 s[%d:%d], vcc" % (sC0, sC0 + 1))
        e("buffer_store_dwordx4 v[196:199], v%d, s[%d:%d], s%d offen sc1" % (vPO, SP, SP + 3, sSL))
        e("buffer_store_dwordx4 v[196:199], v%d, s[%d:%d], s%d offen offset:64 sc1" % (vPO, SP, SP + 3, sSL))
        e("s_mov_b64 exec, -1")

    e("v_mul_u32_u24 v17, %d, v%d" % (YBLK, vR))
    e("v_lshlrev_b32 v3, 4, v%d" % vG)
    e("v_add_u32 v%d, v17, v3" % vY)
    for ee in (0, 1):
        if ee == 0:
            e("v_mov_b32 v17, v%d" % vR)
        else:
            e("v_add_u32 v17, 1, v%d" % vR)
        e("v_and_b32 v3, 1, v17")
        e("v_lshrrev_b32 v17, 1, v17")
        e("v_mul_u32_u24 v17, %d, v17" % XBLK)
        e("v_lshlrev_b32 v4, 9, v3")
        e("v_add_u32 v17, v17, v4")
        e("v_lshlrev_b32 v3, 1, v3")
        e("v_xor_b32 v3, v3, v%d" % vG)
        e("v_lshlrev_b32 v3, 4, v3")
        e("v_add_u32 v%d, v17, v3" % vX[ee])
    e("v_lshrrev_b32 v3, 2, v%d" % vR)
    e("v_and_b32 v4, 3, v0")
    e("v_lshrrev_b32 v5, 1, v3")
    e("v_and_b32 v6, 1, v%d" % vG)
    e("v_lshlrev_b32 v6, 1, v6")
    e("v_or_b32 v5, v5, v6")
    e("v_xor_b32 v5, s%d, v5" % sWAVE)
    e("v_lshlrev_b32 v5, 5, v5")
    e("v_lshlrev_b32 v4, 3, v4")
    e("v_add_u32 v5, v5, v4")
    e("v_lshlrev_b32 v3, 7, v3")
    e("v_add_u32 v5, v5, v3")
    e("v_lshlrev_b32 v3, 10, v%d" % vG)
    e("v_add_u32 v%d, v5, v3" % vW[0])
    e("v_add_u32 v%d, 0x10000, v%d" % (vW[1], vW[0]))
    e("v_add_u32 v%d, 0x20000, v%d" % (vW[2], vW[0]))
    e("v_mov_b32 v%d, v%d" % (vXD[0][0], vX[0]))
    e("v_mov_b32 v%d, v%d" % (vXD[0][1], vX[1]))
    e("s_mov_b32 s%d, 0" % sSQ)
    e("s_mov_b32 s%d, 0" % sCC)

    class Q:
        def __init__(self):
            self.q = []

        def issue(self, tag):
            self.q.append(tag)

        def need(self, tags):
            idx = -1
            for i, t in enumerate(self.q):
                if t in tags:
                    idx = i
            if idx < 0:
                return
            n = min(len(self.q) - 1 - idx, 15)
            e("s_waitcnt lgkmcnt(%d)" % n)
            self.q = self.q[len(self.q) - n:] if n > 0 else []

        def drain(self):
            e("s_waitcnt lgkmcnt(0)")
            self.q = []

    q = Q()

    def rd_w(slot, buf, half):
        a = wslot_addr(slot) + half * 512
        r = WF[buf] + 2 * half
        e("ds_read_b64_tr_b16 v[%d:%d], v%d offset:%d" % (r, r + 1, vW[a >> 16], a & 0xffff))
        q.issue(("w", buf, half))

    def rd_x(st, u):
        ee, up = u >> 3, u & 7
        r = WIN + 4 * u
        if st["dyn"] is None:
            e("ds_read_b128 v[%d:%d], v%d offset:%d" % (r, r + 3, vY, st["xoff"] + ee * YBLK + up * 128))
        else:
            e("ds_read_b128 v[%d:%d], v%d offset:%d" % (r, r + 3, vXD[st["dyn"]][ee], up * 64))
        q.issue(("x", u))

    def mfma(acc, t, buf, u):
        q.need({("w", buf, 0), ("w", buf, 1), ("x", u)})
        a = acc + 4 * t
        w = WF[buf]
        x = WIN + 4 * u
        e("v_mfma_f32_16x16x32_bf16 v[%d:%d], v[%d:%d], v[%d:%d], v[%d:%d]" % (a, a + 3, w, w + 3, x, x + 3, a, a + 3))

    def groups_of(st):
        return [(0, 1), (2, 3), (4, 5), (6, 7)] if st["n"] == 8 else [(0,), (1, 2), (3, 4), (5, 6)]

    def wreads(st, k):
        out = []
        for j, tap in enumerate(groups_of(st)[k]):
            for h in (0, 1):
                out.append(("w", st["slots"][tap], 2 * (k & 1) + j, h))
        return out

    def do_read(st, rd):
        if rd[0] == "w":
            rd_w(rd[1], rd[2], rd[3])
        else:
            rd_x(st, rd[1])

    def next_prefetch(cur, nxt):
        a = groups_of(cur)[3][0]
        ws = wreads(nxt, 0)
        xs = []
        for m in range(9):
            pos = -1 if m < a else 2 * (m - a)
            xs.append((pos, ("x", m)))
        return [(-1, ws[0]), (-1, ws[1]), xs[0], xs[1]] + [(-1, r) for r in ws[2:]] + xs[2:]

    def stage(cur, nxt, with_mfma=True, only_last=False, pre_last=None):
        gs = groups_of(cur)
        loaded = 9
        for k in range(4):
            if only_last and k < 3:
                continue
            taps = gs[k]
            seqm = [(t, tap) for t in range(8) for tap in taps]
            if k < 3:
                nt = gs[k + 1]
                hi = nt[-1] + 7
                pend = [(-1, cur, r) for r in wreads(cur, k + 1)]
                pend += [(-1, cur, ("x", u)) for u in range(loaded, hi + 1)]
                loaded = max(loaded, hi + 1)
            else:
                if pre_last is not None:
                    pre_last()
                q.drain()
                e("s_barrier")
                pend = [(pos, nxt, r) for (pos, r) in next_prefetch(cur, nxt)]
            for pos, (t, tap) in enumerate(seqm):
                if with_mfma:
                    mfma(cur["acc"], t, 2 * (k & 1) + taps.index(tap), t + tap)
                for j, (ep, st, r) in enumerate(pend):
                    if ep <= pos:
                        do_read(st, r)
                        pend.pop(j)
                        break
            for (ep, st, r) in pend:
                do_read(st, r)

    P1 = []
    tn = 0
    for j in range(4):
        for kh in range(2):
            n = 7 if j == 3 else 8
            P1.append(dict(acc=(ACCB, ACCC, ACCB, ACCC)[j], dyn=None, xoff=(j & 1) * YBUF + kh * 64, n=n, j=j, kh=kh,
                           slots=[(tn + i) % 31 for i in range(n)]))
            tn += n
    assert tn == 62
    P2 = [dict(acc=ACCA, dyn=j & 1, n=8, slots=list(range(8 * j, 8 * j + 8))) for j in range(4)]

    def itstamp(base, sh=2):
        if not opts.get("itstamp"):
            return
        e("s_memtime s[94:95]")
        e("s_lshl_b32 s96, s2, 2")
        e("s_add_u32 s96, s96, s%d" % sWAVE)
        e("s_lshl_b32 s96, s96, 7")
        e("s_add_u32 s96, s96, 0x%x" % (STAMP_OFF + (2 << 20) + 4 * base))
        e("s_lshl_b32 s97, s%d, %d" % (sCC, sh))
        e("s_add_u32 s96, s96, s97")
        e("s_waitcnt lgkmcnt(0)")
        e("v_mov_b32 v192, s96")
        e("v_mov_b32 v193, s94")
        e("global_store_dword v192, v193, s[16:17]")

    def gs_math():
        e("s_waitcnt vmcnt(0)")
        for k in range(8):
            u = gu + 4 * (k % 2)
            e("v_lshlrev_b32 v%d, 16, v%d" % (u, g0 + k))
            e("v_and_b32 v%d, 0xffff0000, v%d" % (u + 1, g0 + k))
            e("v_lshlrev_b32 v%d, 16, v%d" % (u + 2, g1 + k))
            e("v_and_b32 v%d, 0xffff0000, v%d" % (u + 3, g1 + k))
            e("v_pk_add_f32 v[%d:%d], v[%d:%d], v[%d:%d]" % (u, u + 1, u, u + 1, u + 2, u + 3))
            e("v_cvt_pk_bf16_f32 v%d, v%d, v%d" % (g0 + k, u, u + 1))
        e("buffer_store_dwordx4 v[%d:%d], v18, s[%d:%d], s%d offen sc1" % (g0, g0 + 3, SG, SG + 3, sGD))
        e("buffer_store_dwordx4 v[%d:%d], v18, s[%d:%d], s%d offen offset:16 sc1" % (g0 + 4, g0 + 7, SG, SG + 3, sGD))
        clear_slot()

    e.c("first barrier + initial reads")
    stage(P1[7], P1[0], with_mfma=False, only_last=True)
    stamp()
    itstamp(0)
    if GSL == 1:
        gs_loads()
    e.label("L_p1")
    for j in range(8):
        e.c("pass1 stage %d" % j)
        if j < 7:
            stage(P1[j], P1[j + 1])
        else:
            qsave = list(q.q)
            e("s_cmp_eq_u32 s%d, 3" % sCC)
            e("s_cbranch_scc1 L_p1_last")
            stage(P1[7], P1[0])
        if j == 3:
            e("s_cmp_lg_u32 s%d, 0" % sCC)
            e("s_cbranch_scc1 L_nogs")
            if GSL == 2:
                gs_loads()
            else:
                gs_math()
            e.label("L_nogs")
            itstamp(1, 3)
    e("s_cmp_lg_u32 s%d, 1" % sCC)
    e("s_cbranch_scc1 L_nodr")
    e("s_waitcnt vmcnt(0)")
    e.label("L_nodr")
    if GSL == 2:
        e("s_cmp_lg_u32 s%d, 0" % sCC)
        e("s_cbranch_scc1 L_nogs2")
        gs_math()
        e.label("L_nogs2")
    itstamp(2, 3)
    e("s_add_u32 s%d, s%d, 1" % (sCC, sCC))
    e("s_branch L_p1")
    e.label("L_p1_last")
    q.q = qsave
    stage(P1[7], P2[0])
    itstamp(2, 3)
    for i in range(32):
        e("v_mov_b32 v%d, 0" % (ACCA + i))
    stamp()
    e("s_mov_b32 s%d, 0" % sCC)
    e.label("L_p2")
    for j in range(4):
        e.c("pass2 stage %d" % j)

        def pre(j=j):
            e("s_add_u32 s%d, s%d, %d" % (sSQ, sSQ, SEQ))
            e("s_cmp_ge_u32 s%d, %d" % (sSQ, 3 * SEQ))
            e("s_cselect_b32 s%d, 0, s%d" % (sSQ, sSQ))
            s_ = vXD[(j + 1) & 1]
            e("v_add_u32 v%d, s%d, v%d" % (s_[0], sSQ, vX[0]))
            e("v_add_u32 v%d, s%d, v%d" % (s_[1], sSQ, vX[1]))
        stage(P2[j], P2[(j + 1) % 4], pre_last=pre)
    itstamp(9)
    e("s_add_u32 s%d, s%d, 1" % (sCC, sCC))
    e("s_cmp_lt_u32 s%d, 4" % sCC)
    e("s_cbranch_scc1 L_p2")

    vS = WIN
    vM = WIN + 4
    vPV = WIN + 8
    vT = WIN + 12
    vP = WIN + 20
    vGF, vBF = WIN + 36, WIN + 40
    vCA, vCB = WIN + 44, WIN + 48
    vK0, vK1, vONE = WIN + 52, WIN + 54, WIN + 56
    vN1 = 17

    def masks():
        e("s_cmp_eq_u32 s%d, 31" % sST_)
        e("s_movk_i32 s%d, %d" % (sNV, TROWS))
        e("s_cselect_b32 s%d, %d, s%d" % (sNV, LAST_VALID, sNV))
        e("s_mov_b32 s%d, 0x%08x" % (sRN, f32(1.0 / TROWS)))
        e("s_cselect_b32 s%d, 0x%08x, s%d" % (sRN, f32(1.0 / LAST_VALID), sRN))
        e("s_lshr_b32 s%d, s%d, 4" % (sA, sNV))
        e("s_and_b32 s%d, s%d, 15" % (sBB, sNV))
        e("v_cmp_gt_u32 s[%d:%d], s%d, v%d" % (sMF, sMF + 1, sA, vR))
        e("v_cmp_ge_u32 s[%d:%d], s%d, v%d" % (sMP, sMP + 1, sA, vR))

    def H(tp):
        return (ACCB if (tp & 1) == 0 else ACCA) + 4 * (tp >> 1)

    def pk(op, d, a, b, c=None, mods=""):
        s = "%s v[%d:%d], v[%d:%d], v[%d:%d]" % (op, d, d + 1, a, a + 1, b, b + 1)
        if c is not None:
            s += ", v[%d:%d]" % (c, c + 1)
        e(s + mods)

    def set_exec(t):
        e("s_cmp_gt_i32 s%d, %d" % (sBB, t))
        e("s_cselect_b64 exec, s[%d:%d], s[%d:%d]" % (sMP, sMP + 1, sMF, sMF + 1))

    def dpp_reduce(base, n):
        for sh in (8, 4, 2, 1):
            for i in range(n):
                e("v_add_f32_dpp v%d, v%d, v%d row_ror:%d row_mask:0xf bank_mask:0xf" % (base + i, base + i, base + i, sh))

    e.c("epilogue")
    e("s_waitcnt lgkmcnt(0) vmcnt(0)")
    stamp()
    masks()
    for r_ in range(8):
        e("v_mov_b32 v%d, 0" % (vS + r_))
    e("s_nop 4")
    NEG = " neg_lo:[0,1] neg_hi:[0,1]"
    for r_ in range(4):
        e("v_mov_b32_dpp v%d, v%d row_shl:1 row_mask:0xf bank_mask:0xf bound_ctrl:0" % (vT + r_, ACCB + r_))
    for t in range(8):
        nxt_ = ACCB + 4 * (t + 1) if t < 7 else vT
        for hh in (0, 2):
            pk("v_pk_add_f32", ACCA + 4 * t + hh, ACCA + 4 * t + hh, ACCC + 4 * t + hh, mods=NEG)
        for hh in (0, 2):
            pk("v_pk_add_f32", ACCA + 4 * t + hh, ACCA + 4 * t + hh, nxt_ + hh, mods=NEG)
        for hh in (0, 2):
            pk("v_pk_add_f32", ACCB + 4 * t + hh, ACCB + 4 * t + hh, ACCC + 4 * t + hh)
    for r_ in range(4):
        e("v_mov_b32_dpp v%d, v%d row_newbcast:0 row_mask:0xf bank_mask:0xf" % (vPV + r_, ACCB + r_))
    for tp in range(16):
        set_exec(tp)
        tt = vT + 4 * (tp & 1)
        for hh in (0, 2):
            pk("v_pk_add_f32", tt + hh, H(tp) + hh, vPV + hh, mods=NEG)
        for hh in (0, 2):
            pk("v_pk_add_f32", vS + hh, vS + hh, tt + hh)
            pk("v_pk_fma_f32", vM + hh, tt + hh, tt + hh, vM + hh)
    e("s_mov_b64 exec, -1")
    e("s_nop 1")
    dpp_reduce(vS, 8)
    for r_ in range(4):
        e("v_mul_f32 v%d, s%d, v%d" % (vT + r_, sRN, vS + r_))
    for r_ in range(4):
        e("v_fma_f32 v%d, -v%d, v%d, v%d" % (vM + r_, vT + r_, vS + r_, vM + r_))
        e("v_add_f32 v%d, v%d, v%d" % (vS + r_, vPV + r_, vT + r_))
    for r_ in range(4):
        e("v_max_f32 v%d, 0, v%d" % (vM + r_, vM + r_))
    for r_ in range(8):
        e("v_or_b32 v%d, 1, v%d" % (vS + r_, vS + r_))
    e("v_cmp_eq_u32 vcc, 0, v%d" % vR)
    e("s_and_saveexec_b64 s[%d:%d], vcc" % (sC0, sC0 + 1))
    e("buffer_store_dwordx4 v[%d:%d], v%d, s[%d:%d], s%d offen sc1" % (vS, vS + 3, vPO, SP, SP + 3, sSL))
    e("buffer_store_dwordx4 v[%d:%d], v%d, s[%d:%d], s%d offen offset:64 sc1" % (vM, vM + 3, vPO, SP, SP + 3, sSL))
    e("s_mov_b64 exec, -1")
    stamp()
    NT_OWN = 8 if SPLIT else 16
    FLAG = 40960
    MAGIC = 0x5a5a1234

    def out_setup():
        e("s_mul_i32 s%d, s%d, %d" % (sOB, sB, L * 512))
        e("s_mul_i32 s%d, s%d, %d" % (sT1, sST_, TROWS * 512))
        e("s_add_u32 s%d, s%d, s%d" % (sOB, sOB, sT1))
        e("s_add_u32 s%d, s%d, s%d" % (sOB, sOB, sN2))
        e("s_lshl_b32 s%d, s%d, 5" % (sT1, sWAVE))
        e("s_add_u32 s%d, s%d, s%d" % (sOB, sOB, sT1))
        e("v_lshlrev_b32 v4, 13, v%d" % vR)
        e("v_lshlrev_b32 v3, 3, v%d" % vG)
        e("v_add_u32 v4, v4, v3")
        for k in (0, 1):
            e("v_mov_b32 v%d, 0x%08x" % (vK0 + k, f32(c0)))
            e("v_mov_b32 v%d, 0x%08x" % (vK1 + k, f32(c1)))
            e("v_mov_b32 v%d, 1.0" % (vONE + k))
        e("s_lshl_b32 s%d, s%d, 12" % (sT0, sWAVE))
        e("s_add_u32 s%d, s%d, %d" % (sT0, sT0, FLAG))
        e("v_lshlrev_b32 v2, 4, v0")
        e("v_add_u32 v2, s%d, v2" % sT0)
        e("v_mov_b32 v6, s%d" % sT0)

    c0 = -2.0 * math.log2(math.e) * math.sqrt(2.0 / math.pi)
    c1 = c0 * 0.044715
    e("v_lshlrev_b32 v1, 7, v%d" % vR)
    e("v_add_u32 v1, v1, v%d" % vPO)

    def sweep():
        e("buffer_load_dwordx4 v[%d:%d], v1, s[%d:%d], s%d offen sc1" % (vP, vP + 3, SP, SP + 3, sPB))
        e("buffer_load_dwordx4 v[%d:%d], v1, s[%d:%d], s%d offen offset:64 sc1" % (vP + 4, vP + 7, SP, SP + 3, sPB))
        e("buffer_load_dwordx4 v[%d:%d], v1, s[%d:%d], s%d offen offset:2048 sc1" % (vP + 8, vP + 11, SP, SP + 3, sPB))
        e("buffer_load_dwordx4 v[%d:%d], v1, s[%d:%d], s%d offen offset:2112 sc1" % (vP + 12, vP + 15, SP, SP + 3, sPB))

    sweep()
    out_setup()
    if SPLIT:
        e("v_lshlrev_b32 v5, 4, v0")
        e("s_lshl_b32 s%d, s%d, 13" % (sT0, sWAVE))
        e("v_add_u32 v5, s%d, v5" % sT0)
        for tp in range(8, 16):
            e("ds_write_b128 v5, v[%d:%d] offset:%d" % (H(tp), H(tp) + 3, (tp - 8) * 1024))
        e("v_mov_b32 v3, 0")
        e("ds_write_b32 v6, v3 offset:2048")
        e("s_waitcnt lgkmcnt(0)")
        e("s_barrier")
    e("v_mov_b32 v%d, 0x%08x" % (vN1, f32(float(TROWS))))
    e("v_mov_b32 v3, 0x%08x" % f32(float(LAST_VALID)))
    e("v_cmp_eq_u32 vcc, 15, v%d" % vR)
    e("v_lshlrev_b32 v%d, 16, v%d" % (vGF + 0, vGAM))
    e("v_and_b32 v%d, 0xffff0000, v%d" % (vGF + 1, vGAM))
    e("v_cndmask_b32 v%d, v%d, v3, vcc" % (vN1, vN1))
    e("v_lshlrev_b32 v%d, 16, v%d" % (vGF + 2, vGAM + 1))
    e("v_and_b32 v%d, 0xffff0000, v%d" % (vGF + 3, vGAM + 1))
    e("v_lshlrev_b32 v%d, 16, v%d" % (vBF + 0, vBET))
    e("v_and_b32 v%d, 0xffff0000, v%d" % (vBF + 1, vBET))
    e("v_lshlrev_b32 v%d, 16, v%d" % (vBF + 2, vBET + 1))
    e("v_and_b32 v%d, 0xffff0000, v%d" % (vBF + 3, vBET + 1))
    sOW0, sOW1 = 56, 58
    e("s_and_b32 s%d, s%d, 15" % (sT0, sST_))
    e("v_cmp_eq_u32 s[%d:%d], s%d, v%d" % (sOW0, sOW0 + 1, sT0, vR))
    e("s_cmp_ge_u32 s%d, 16" % sST_)
    e("s_cselect_b64 s[%d:%d], s[%d:%d], 0" % (sOW1, sOW1 + 1, sOW0, sOW0 + 1))
    e("s_cselect_b64 s[%d:%d], 0, s[%d:%d]" % (sOW0, sOW0 + 1, sOW0, sOW0 + 1))
    e("s_mov_b32 s%d, 0" % sCNT)
    e("s_branch L_poll_chk")
    e.label("L_poll")
    sweep()
    e.label("L_poll_chk")
    e("s_add_u32 s%d, s%d, 1" % (sCNT, sCNT))
    e("s_waitcnt vmcnt(0)")
    for i in range(8):
        e("v_cndmask_b32 v%d, v%d, v%d, s[%d:%d]" % (vP + i, vP + i, vS + i, sOW0, sOW0 + 1))
        e("v_cndmask_b32 v%d, v%d, v%d, s[%d:%d]" % (vP + 8 + i, vP + 8 + i, vS + i, sOW1, sOW1 + 1))
    e("v_and_b32 v3, v%d, v%d" % (vP, vP + 1))
    for i in range(2, 16, 2):
        e("v_and_b32 v5, v%d, v%d" % (vP + i, vP + i + 1))
        e("v_and_b32 v3, v3, v5")
    e("v_and_b32 v3, 1, v3")
    e("v_cmp_eq_u32 vcc, 0, v3")
    e("s_cmp_ge_u32 s%d, 0x200000" % sCNT)
    e("s_cbranch_scc1 L_poll_done")
    e("s_cbranch_vccnz L_poll")
    e.label("L_poll_done")
    stamp()
    e("s_mov_b32 s%d, 0x%08x" % (sT1, f32(float(TROWS))))
    e("s_mov_b32 s%d, 0x%08x" % (sT2, f32(1.0 / L)))
    for r_ in range(4):
        e("v_mul_f32 v%d, s%d, v%d" % (vS + r_, sT1, vP + r_))
    for r_ in range(4):
        e("v_fmac_f32 v%d, v%d, v%d" % (vS + r_, vN1, vP + 8 + r_))
    for r_ in range(4):
        e("v_add_f32 v%d, v%d, v%d" % (vM + r_, vP + 4 + r_, vP + 12 + r_))
    dpp_reduce(vS, 4)
    for r_ in range(4):
        e("v_mul_f32 v%d, s%d, v%d" % (vS + r_, sT2, vS + r_))
    for r_ in range(4):
        e("v_sub_f32 v%d, v%d, v%d" % (vT + r_, vP + r_, vS + r_))
        e("v_sub_f32 v%d, v%d, v%d" % (vT + 4 + r_, vP + 8 + r_, vS + r_))
    for r_ in range(4):
        e("v_mul_f32 v%d, v%d, v%d" % (vT + r_, vT + r_, vT + r_))
        e("v_mul_f32 v%d, v%d, v%d" % (vT + 4 + r_, vT + 4 + r_, vT + 4 + r_))
    for r_ in range(4):
        e("v_fmac_f32 v%d, s%d, v%d" % (vM + r_, sT1, vT + r_))
    for r_ in range(4):
        e("v_fmac_f32 v%d, v%d, v%d" % (vM + r_, vN1, vT + 4 + r_))
    e("s_nop 0")
    dpp_reduce(vM, 4)
    e("v_mov_b32 v3, 0x%08x" % f32(1e-5))
    for r_ in range(4):
        e("v_fma_f32 v%d, v%d, s%d, v3" % (vM + r_, vM + r_, sT2))
    for r_ in range(4):
        e("v_rsq_f32 v%d, v%d" % (vM + r_, vM + r_))
    e("s_nop 0")
    for r_ in range(4):
        e("v_mul_f32 v%d, v%d, v%d" % (vCA + r_, vM + r_, vGF + r_))
    for r_ in range(4):
        e("v_fma_f32 v%d, -v%d, v%d, v%d" % (vCB + r_, vS + r_, vCA + r_, vBF + r_))
    if SPLIT:
        e("ds_write_b128 v2, v[%d:%d]" % (vCA, vCA + 3))
        e("ds_write_b128 v2, v[%d:%d] offset:1024" % (vCB, vCB + 3))
        e("v_mov_b32 v3, 0x%08x" % MAGIC)
        e("ds_write_b32 v6, v3 offset:2048")
    e.label("L_final")
    e("s_add_u32 s%d, s%d, 4096" % (sT1, sOB))
    for tp in range(NT_OWN):
        y = H(tp)
        z = ACCC + 8 * (tp % 4)
        o = z + 4
        if not DEBUG_H:
            for hh in (0, 2):
                pk("v_pk_fma_f32", y + hh, y + hh, vCA + hh, vCB + hh)
            for hh in (0, 2):
                pk("v_pk_mul_f32", z + hh, y + hh, y + hh)
            for hh in (0, 2):
                pk("v_pk_fma_f32", z + hh, z + hh, vK1, vK0)
            for hh in (0, 2):
                pk("v_pk_mul_f32", z + hh, z + hh, y + hh)
            for r_ in range(4):
                e("v_exp_f32 v%d, v%d" % (z + r_, z + r_))
            for hh in (0, 2):
                pk("v_pk_add_f32", z + hh, z + hh, vONE)
            for r_ in range(4):
                e("v_rcp_f32 v%d, v%d" % (z + r_, z + r_))
            for hh in (0, 2):
                pk("v_pk_mul_f32", y + hh, y + hh, z + hh)
        e("v_cvt_pk_bf16_f32 v%d, v%d, v%d" % (o, y, y + 1))
        e("v_cvt_pk_bf16_f32 v%d, v%d, v%d" % (o + 1, y + 2, y + 3))
        set_exec(tp)
        sb = sOB if tp < 8 else sT1
        e("buffer_store_dwordx2 v[%d:%d], v4, s[%d:%d], s%d offen offset:%d%s" % (o, o + 1, SO, SO + 3, sb, (tp % 8) * 512,
                                                                             ["", " sc1", " nt", " sc0 sc1", " sc1 nt"][opts.get("ost", 0)]))
        e("s_mov_b64 exec, -1")
    if STAMP:
        e("s_cmp_eq_u32 s%d, 1" % sROLE)
        e("s_cbranch_scc1 L_end")
        stamp()
        e("s_waitcnt vmcnt(0)")
        stamp()
        e("s_lshl_b32 s%d, s2, 2" % sT0)
        e("s_add_u32 s%d, s%d, s%d" % (sT0, sT0, sWAVE))
        e("s_lshl_b32 s%d, s%d, 7" % (sT0, sT0))
        e("s_add_u32 s%d, s%d, 0x%x" % (sT0, sT0, STAMP_OFF))
        e("v_mov_b32 v1, s%d" % sT0)
        e("s_mov_b64 exec, 1")
        for i in range(8):
            e("v_mov_b32 v2, s%d" % (sST + 2 * i))
            e("v_mov_b32 v3, s%d" % (sST + 2 * i + 1))
            e("global_store_dwordx2 v1, v[2:3], s[16:17] offset:%d" % (8 * i))
    e("s_endpgm")

    idx_l = len(e.lines)
    vLW, vXO, vSL, vSO = 1, 2, 3, 5
    RA, UT, RS = 120, 144, 160
    sMW, sMX, sWC, sX1, sS2, sSI, sSO_ = sL0, sL1, sL2, sL3, sL4, sL5, sL6
    sG2, sSB, sSQ2, sMS, sID = sA, sBB, sNV, sRN, sOB
    sXB0, sSB0 = sLH, sDT
    e("s_setprio %d" % opts.get("lprio", 0))
    TAPO = [0, 2, 1, 3]

    def late_setup():
        more_srds()
        e("v_lshlrev_b32 v%d, 4, v0" % vSL)
        e("v_lshrrev_b32 v22, 2, v21")
        e("v_mul_u32_u24 v22, %d, v22" % S_CC)
        e("v_lshlrev_b32 v23, 6, v20")
        e("v_add_u32 v22, v22, v23")
        e("v_and_b32 v23, 3, v21")
        e("v_lshlrev_b32 v23, 4, v23")
        e("v_add_u32 v%d, v22, v23" % vSO)
        e("s_mul_i32 s%d, s%d, %d" % (sSB, sGM, S_GM))
        e("s_lshl_b32 s%d, s%d, 10" % (sT0, sWAVE))
        e("s_add_u32 s%d, s%d, s%d" % (sS2, sSB, sT0))
        e("s_mov_b32 s%d, s%d" % (sID, sWAVE))
        e("s_add_u32 s%d, s%d, s%d" % (sXB0, sXB, sN2))
        e("s_mul_i32 s%d, s%d, %d" % (sSB0, sNT, 2 * S_CC))
        e("s_add_u32 s%d, s%d, s%d" % (sSB0, sSB0, sSB))
        e("s_mov_b32 s%d, s%d" % (sG2, sN2))
        e("s_mov_b32 s%d, 0" % sSQ2)
        e("s_mul_i32 s%d, s%d, %d" % (sMS, sWAVE, XBLK))
        for k in range(3):
            e("v_mov_b32 v%d, 0" % (6 + k))

    def stage_desc(m):
        return P1[m % 8] if m < 32 else P2[(m - 32) % 4]

    last_use = {}
    wsched = {}
    LEAD = 3
    for m in range(48):
        st = stage_desc(m)
        for i in range(st["n"]):
            sl = st["slots"][i]
            if sl == 31 and sl not in last_use:
                last_use[sl] = 31
            free = last_use[sl] + 1 if sl in last_use else -1
            at = max(free, m - LEAD, -1)
            wsched.setdefault(at, []).append((m, i))
            last_use[sl] = m

    def it_wt(items, m, i, base1, base2):
        st = stage_desc(m)
        items.append(("t", "s_add_u32 m0, s%d, %d" % (sMW, wslot_addr(st["slots"][i]))))
        if m < 32:
            C = m // 8
            off = (C - base1) * 32768 + st["kh"] * 16384 + (4 * i + TAPO[st["j"]]) * 131072
            items.append(("t", "s_add_u32 s%d, s%d, %d" % (sT0, sWC, off)))
            items.append(("v", ("W", m), "buffer_load_dwordx4 v%d, s[%d:%d], s%d offen lds" % (vLW, SW, SW + 3, sT0)))
        else:
            cc, p = divmod(m - 32, 2)
            off = (cc - base2) * 16384 + (p * 8 + i) * 131072
            items.append(("t", "s_add_u32 s%d, s%d, %d" % (sT0, sG2, off)))
            items.append(("v", ("W", m), "buffer_load_dwordx4 v%d, s[%d:%d], s%d offen sc1 lds" % (vLW, SG, SG + 3, sT0)))

    def it_x1(items, sq, base1):
        C, j = divmod(sq, 4)
        rel = TAPO[j] * 512 + (C - base1) * 128
        buf = (j & 1) * YBUF
        tag = ("X", 2 * sq)
        for mm in range(4):
            items.append(("t", "s_add_u32 m0, s%d, %d" % (sMX, buf + 4 * mm * YBLK)))
            items.append(("t", "s_add_u32 s%d, s%d, %d" % (sT0, sX1, mm * 65536 + rel)))
            items.append(("v", tag, "buffer_load_dwordx4 v%d, s[%d:%d], s%d offen lds" % (vXO, SX, SX + 3, sT0)))
        items.append(("t", "s_mov_b32 m0, %d" % (buf + 16 * YBLK)))
        items.append(("t", "s_add_u32 s%d, s%d, %d" % (sT0, sXB, 16 * 16384 + rel)))
        items.append(("t", "s_mov_b32 exec_hi, 0xffffff"))
        items.append(("v", tag, "buffer_load_dwordx4 v%d, s[%d:%d], s%d offen lds" % (vXO, SX, SX + 3, sT0)))
        items.append(("t", "s_mov_b32 exec_hi, -1"))

    def it_x2(items, m, base2, part="all", sq_back=False):
        if m > 47:
            return
        cc, p = divmod(m - 32, 2)
        rel = p * S_P + (cc - base2) * S_CC
        if part in ("all", "main"):
            items.append(("t", "s_add_u32 s%d, s%d, s%d" % (sT1, sMS, sSQ2)))
            for ap in range(2):
                items.append(("t", "s_add_u32 m0, s%d, %d" % (sT1, ap * 4 * XBLK)))
                items.append(("t", "s_add_u32 s%d, s%d, %d" % (sT0, sS2, ap * 4096 + rel)))
                items.append(("v", ("X", m), "buffer_load_dwordx4 v%d, s[%d:%d], s%d offen sc1 lds" % (vSL, SS, SS + 3, sT0)))
        if part in ("all", "halo"):
            items.append(("t", "s_add_u32 m0, s%d, %d" % (sSQ2, 8 * XBLK)))
            items.append(("t", "s_add_u32 s%d, s%d, %d" % (sT0, sSB, 8 * 1024 + rel)))
            items.append(("t", "s_mov_b64 exec, 0xfffffff"))
            items.append(("v", ("X", m), "buffer_load_dwordx4 v%d, s[%d:%d], s%d offen sc1 lds" % (vSL, SS, SS + 3, sT0)))
            items.append(("t", "s_mov_b64 exec, -1"))
            items.append(("t", "s_add_u32 s%d, s%d, %d" % (sSQ2, sSQ2, SEQ)))
            items.append(("t", "s_cmp_ge_u32 s%d, %d" % (sSQ2, 3 * SEQ)))
            items.append(("t", "s_cselect_b32 s%d, 0, s%d" % (sSQ2, sSQ2)))

    def it_sload(items, task):
        Tt = lambda s_: items.append(("t", s_))
        bf = task % 3
        ra, rb = RA + 8 * bf, RA + 8 * bf + 4
        Tt("s_min_u32 s%d, s%d, 33" % (sT1, sID))
        Tt("s_add_u32 s%d, s%d, 4" % (sID, sID))
        Tt("s_cmp_ge_u32 s%d, 17" % sT1)
        Tt("s_cselect_b32 s%d, 1, 0" % sT2)
        Tt("s_mul_i32 s%d, s%d, 17" % (sT0, sT2))
        Tt("s_sub_u32 s%d, s%d, s%d" % (sT1, sT1, sT0))
        Tt("s_lshl_b32 s%d, s%d, 14" % (sSI, sT1))
        Tt("s_add_u32 s%d, s%d, s%d" % (sSI, sSI, sXB0))
        Tt("s_lshl_b32 s%d, s%d, 9" % (sT0, sT2))
        Tt("s_add_u32 s%d, s%d, s%d" % (sSI, sSI, sT0))
        items.append(("v", ("SL", task), "buffer_load_dwordx4 v[%d:%d], v%d, s[%d:%d], s%d offen offset:1024" % (ra, ra + 3, vXO, SX, SX + 3, sSI)))
        items.append(("v", ("SL", task), "buffer_load_dwordx4 v[%d:%d], v%d, s[%d:%d], s%d offen offset:2048" % (rb, rb + 3, vXO, SX, SX + 3, sSI)))
        Tt("s_mul_i32 s%d, s%d, %d" % (sSO_, sT2, S_P))
        Tt("s_add_u32 s%d, s%d, s%d" % (sSO_, sSO_, sSB0))
        Tt("s_lshl_b32 s%d, s%d, 9" % (sT0, sT1))
        Tt("s_add_u32 s%d, s%d, s%d" % (sSO_, sSO_, sT0))
        Tt("s_and_b32 s%d, s%d, 1" % (sT0, sT1))
        Tt("s_lshl_b32 s%d, s%d, 5" % (sT0, sT0))
        Tt("v_xor_b32 v%d, s%d, v%d" % (6 + bf, sT0, vSO))
        Tt("v_add_u32 v%d, s%d, v%d" % (6 + bf, sSO_, 6 + bf))

    def it_sfin(items, task):
        Tt = lambda s_: items.append(("t", s_))
        bf = task % 3
        ra, rb = RA + 8 * bf, RA + 8 * bf + 4
        items.append(("w", [("SL", task)]))
        for k in range(4):
            u = UT + 4 * k
            Tt("v_lshlrev_b32 v%d, 16, v%d" % (u, ra + k))
            Tt("v_and_b32 v%d, 0xffff0000, v%d" % (u + 1, ra + k))
            Tt("v_lshlrev_b32 v%d, 16, v%d" % (u + 2, rb + k))
            Tt("v_and_b32 v%d, 0xffff0000, v%d" % (u + 3, rb + k))
        for k in range(4):
            u = UT + 4 * k
            Tt("v_pk_add_f32 v[%d:%d], v[%d:%d], v[%d:%d]" % (u, u + 1, u, u + 1, u + 2, u + 3))
        for k in range(4):
            u = UT + 4 * k
            Tt("v_cvt_pk_bf16_f32 v%d, v%d, v%d" % (RS + 4 * bf + k, u, u + 1))
        items.append(("v", ("SS", task), "buffer_store_dwordx4 v[%d:%d], v%d, s[%d:%d], 0 offen sc1" %
                      (RS + 4 * bf, RS + 4 * bf + 3, 6 + bf, SS, SS + 3)))

    SL0 = opts.get("sl0", 1)
    SSTEP = opts.get("sstep", 2)
    s_load_at = {SL0 + SSTEP * k: k for k in range(9)}
    s_fin_at = {SL0 + SSTEP * k + 2: k for k in range(9)}
    SIG = SL0 + SSTEP * 8 + 2 + 3
    assert SIG >= 17 and SIG <= 26, SIG

    def barrier(items, n):
        if n <= 47:
            need = [("W", n), ("X", n)]
        else:
            need = "all"
        if n == SIG:
            need = need + [("SS", k) for k in range(9)]
        items.append(("w", need))
        items.append(("t", "s_barrier"))

    def poll(items):
        lab = "L_gpoll"
        items.append(("t", "v_mov_b32 v20, 0"))
        items.append(("t", "s_mov_b32 s%d, 0" % sCNT))
        items.append(("lab", lab))
        items.append(("t", "global_load_dword v21, v20, s[14:15] sc1"))
        items.append(("t", "s_add_u32 s%d, s%d, 1" % (sCNT, sCNT)))
        items.append(("drain",))
        items.append(("t", "v_readfirstlane_b32 s%d, v21" % sT0))
        items.append(("t", "s_cmp_ge_u32 s%d, 0x200000" % sCNT))
        items.append(("t", "s_cbranch_scc1 %s_d" % lab))
        items.append(("t", "s_cmp_lt_u32 s%d, 256" % sT0))
        items.append(("t", "s_cbranch_scc1 %s" % lab))
        items.append(("lab", lab + "_d"))

    first_p2 = min(n for n, l in wsched.items() if any(m >= 32 for m, i in l))

    def slot_items(n, base1, base2):
        items = []
        if n == first_p2:
            poll(items)
        if n == SIG:
            items.append(("t", "s_cmp_lg_u32 s%d, 0" % sWAVE))
            items.append(("t", "s_cbranch_scc1 L_nosig"))
            items.append(("t", "v_mov_b32 v20, 0"))
            items.append(("t", "v_mov_b32 v21, 1"))
            items.append(("t", "s_mov_b64 exec, 1"))
            items.append(("t", "global_atomic_add v20, v21, s[14:15]"))
            items.append(("t", "s_mov_b64 exec, -1"))
            items.append(("lab", "L_nosig"))
        if n in s_load_at:
            it_sload(items, s_load_at[n])
        if n % 2 == 0 and n // 2 + 1 < 16 and n >= 0:
            it_x1(items, n // 2 + 1, base1)
        if n == 30:
            it_x2(items, 32, base2)
        elif n == 31:
            it_x2(items, 33, base2, part="main")
        elif n == 32:
            it_x2(items, 33, base2, part="halo")
            it_x2(items, 34, base2)
        elif n > 32:
            it_x2(items, n + 2, base2)
        for (m, i) in wsched.get(n, []):
            it_wt(items, m, i, base1, base2)
        if n in s_fin_at:
            it_sfin(items, s_fin_at[n])
        barrier(items, n + 1)
        return items

    pro = []
    it_x1(pro, 0, 0)
    assert wsched[-1] == [(m, i) for m in range(3) for i in range(8)]
    for m in range(3):
        st = P1[m]
        assert st["slots"] == list(range(8 * m, 8 * m + 8))
        pro.append(("t", "s_add_u32 m0, s%d, %d" % (sMW, wslot_addr(8 * m))))
        pro.append(("t", "s_add_u32 s%d, s%d, %d" % (sT0, sWC, st["kh"] * 16384 + TAPO[st["j"]] * 131072)))
        pro.append(("t", "s_mov_b32 s%d, 0" % sT1))
        pro.append(("lab", "L_pw%d" % m))
        pro.append(("t", "buffer_load_dwordx4 v%d, s[%d:%d], s%d offen lds" % (vLW, SW, SW + 3, sT0)))
        pro.append(("t", "s_add_u32 m0, m0, %d" % WSTEP))
        pro.append(("t", "s_add_u32 s%d, s%d, %d" % (sT0, sT0, 4 * 131072)))
        pro.append(("t", "s_add_u32 s%d, s%d, 1" % (sT1, sT1)))
        pro.append(("t", "s_cmp_lt_u32 s%d, 8" % sT1))
        pro.append(("t", "s_cbranch_scc1 L_pw%d" % m))
        for i in range(8):
            pro.append(("vq", ("W", m)))
    pro.append(("late",))
    barrier(pro, 0)
    blocks = [pro]
    for n in range(32):
        blocks.append(slot_items(n, 0, 0))
    blocks.append(slot_items(32, 0, 0))
    p2loop = [sum((slot_items(33 + 4 * it + s, 0, 2 * it) for s in range(4)), []) for it in range(3)]
    blocks += p2loop
    tail = sum((slot_items(n, 0, 6) for n in range(45, 48)), [])
    blocks.append(tail)
    qv = []
    for items in blocks:
        for k, itx in enumerate(items):
            if itx[0] in ("v", "vq"):
                qv.append(itx[1])
            elif itx[0] == "drain":
                qv = []
            elif itx[0] == "w":
                tags = itx[1]
                if tags == "all":
                    n = 0
                else:
                    idx = -1
                    for i, t in enumerate(qv):
                        if t in tags:
                            idx = i
                    n = len(qv) - 1 - idx if idx >= 0 else 63
                n = min(n, 63)
                if n < len(qv):
                    qv = qv[len(qv) - n:] if n > 0 else []
                items[k] = ("wn", n)

    def merge(lists):
        base = lists[0]
        out = []
        for k, itx in enumerate(base):
            if itx[0] == "wn":
                out.append(("wn", min(l[k][1] for l in lists)))
            else:
                for l in lists:
                    assert l[k][0] == itx[0] and l[k][-1] == itx[-1], (l[k], itx)
                out.append(itx)
        return out

    def put(items):
        for itx in items:
            if itx[0] == "t":
                e(itx[1])
            elif itx[0] == "v":
                e(itx[2])
            elif itx[0] == "lab":
                e.label(itx[1])
            elif itx[0] == "drain":
                e("s_waitcnt vmcnt(0)")
            elif itx[0] == "wn":
                e("s_waitcnt vmcnt(%d)" % itx[1])
            elif itx[0] == "late":
                late_setup()

    for k in range(34):
        put(blocks[k])
    e.label("L_l2")
    put(merge(p2loop))
    e("s_add_u32 s%d, s%d, 32768" % (sG2, sG2))
    e("s_add_u32 s%d, s%d, %d" % (sS2, sS2, 2 * S_CC))
    e("s_add_u32 s%d, s%d, %d" % (sSB, sSB, 2 * S_CC))
    e("s_add_u32 s%d, s%d, 1" % (sCC, sCC))
    e("s_cmp_lt_u32 s%d, 3" % sCC)
    e("s_cbranch_scc1 L_l2")
    put(tail)
    if SPLIT:
        e.c("loader joins the epilogue: tiles 8..15 of its partner")
        e("v_and_b32 v%d, 15, v0" % vR)
        e("v_lshrrev_b32 v%d, 4, v0" % vG)
        masks()
        e("s_sub_u32 s%d, s%d, 8" % (sBB, sBB))
        out_setup()
        e("s_add_u32 s%d, s%d, 4096" % (sOB, sOB))
        e("v_lshlrev_b32 v5, 4, v0")
        e("s_lshl_b32 s%d, s%d, 13" % (sT0, sWAVE))
        e("v_add_u32 v5, s%d, v5" % sT0)
        e("s_mov_b32 s%d, 0" % sCNT)
        e("s_barrier")
        for tp in range(8):
            e("ds_read_b128 v[%d:%d], v5 offset:%d" % (H(tp), H(tp) + 3, tp * 1024))
        e.label("L_mbox")
        e("ds_read_b32 v3, v6 offset:2048")
        e("s_add_u32 s%d, s%d, 1" % (sCNT, sCNT))
        e("s_waitcnt lgkmcnt(0)")
        e("v_readfirstlane_b32 s%d, v3" % sT0)
        e("s_cmp_ge_u32 s%d, 0x4000000" % sCNT)
        e("s_cbranch_scc1 L_mbox_d")
        e("s_cmp_lg_u32 s%d, 0x%08x" % (sT0, MAGIC))
        e("s_cbranch_scc1 L_mbox")
        e.label("L_mbox_d")
        e("ds_read_b128 v[%d:%d], v2" % (vCA, vCA + 3))
        e("ds_read_b128 v[%d:%d], v2 offset:1024" % (vCB, vCB + 3))
        e("s_waitcnt lgkmcnt(0)")
        e("s_branch L_final")
    else:
        e("s_endpgm")
    idx_e = len(e.lines)
    e.lines = e.lines[:idx_c] + e.lines[idx_l:idx_e] + e.lines[idx_c:idx_l]
    e.label("L_end")
    e("s_endpgm")

    hdr = """; Kernarg layout for this problem (56 bytes, ptrs only, base s[0:1]):
;   offset   0: d_in[0] x  shape=(2, 16000, 256) dtype=bfloat16
;   offset   8: d_in[1] w  shape=(31, 256, 256) dtype=bfloat16
;   offset  16: d_in[2] gn_gamma  shape=(256,) dtype=bfloat16
;   offset  24: d_in[3] gn_beta  shape=(256,) dtype=bfloat16
;   offset  32: d_out     shape=(2, 7985, 256) dtype=bfloat16
;   offset  40: d_debug   256 bytes
;   offset  48: d_ws      workspace
; Generated by work/gen5.py (implicit-GEMM conv via 2-parallel fast FIR + fused group norm + GELU)
; @launch grid=(256,1,1) block=(512,1,1) lds=%d
.amdgcn_target "amdgcn-amd-amdhsa--gfx950"
.text
.globl %s_kernel
.p2align 8
.type %s_kernel,@function
%s_kernel:
""" % (LDS_TOTAL, NAME, NAME, NAME)
    ftr = """.section .rodata,"a"
.p2align 6
.amdhsa_kernel %s_kernel
  .amdhsa_next_free_vgpr 200
  .amdhsa_next_free_sgpr 100
  .amdhsa_accum_offset 200
  .amdhsa_group_segment_fixed_size 0
  .amdhsa_kernarg_size 56
  .amdhsa_user_sgpr_count 2
  .amdhsa_user_sgpr_kernarg_segment_ptr 1
  .amdhsa_system_sgpr_workgroup_id_x 1
.end_amdhsa_kernel
""" % NAME
    return hdr + e.text() + ftr


if __name__ == "__main__":
    opts = {}
    out = "cdna_kernels/%s.s" % NAME
    for a in sys.argv[1:]:
        if a.startswith("-o"):
            out = a[2:]
        elif "=" in a:
            k, v = a.split("=")
            opts[k] = int(v)
        else:
            opts[a] = True
    open(out, "w").write(gen(opts))
    print("wrote", out)
```

```python
import sys
import struct
import math

NAME = "standalone__self_sup_conv_stem_wavlm__speech"

B_, T, D, KT = 2, 16000, 256, 31
L = 7985
X_BYTES = B_ * T * D * 2
W_BYTES = KT * D * D * 2
OUT_BYTES = B_ * L * D * 2
TROWS = 255
LAST_VALID = L - 31 * TROWS

YBLK = 1056
YBUF = 16 * YBLK + 7 * 128
XBLK = 1088
SEQ = 8 * XBLK + 7 * 64
WBASE = 2 * YBUF
WSTEP = 4096
LDS_TOTAL = 163840
assert WBASE + 31 * WSTEP <= LDS_TOTAL and 3 * SEQ + WSTEP <= WBASE


def wslot_addr(n):
    return WBASE + n * WSTEP if n < 31 else 3 * SEQ


FL_OFF = 32 * 4096
PART_BYTES = FL_OFF + 64 * 128
GS_OFF = 1 << 20
GS_BYTES = 16 * 131072
S_OFF = 4 << 20
S_CC = 144 * 64
S_P = 8 * S_CC
S_GM = 2 * S_P
S_BYTES = 64 * S_GM
STAMP_OFF = 16 << 20


def f32(x):
    return struct.unpack("<I", struct.pack("<f", x))[0]


class Emit:
    def __init__(self):
        self.lines = []

    def __call__(self, s):
        self.lines.append("    " + s)

    def label(self, s):
        self.lines.append(s + ":")

    def c(self, s):
        self.lines.append("    ; " + s)

    def text(self):
        return "\n".join(self.lines) + "\n"


def gen(opts):
    e = Emit()
    DEBUG_H = opts.get("debug_h", False)
    STAMP = opts.get("stamp", False)
    S0 = opts.get("s0", 1)
    GSL = opts.get("gsl", 0)
    SPLIT = opts.get("split", 1)

    SX, SW, SO, SP, SG, SS = 20, 24, 28, 32, 36, 40
    sWAVE, sNT, sGM, sB, sST_, sXB, sN2 = 44, 45, 46, 47, 48, 49, 50
    sT0, sT1, sT2 = 51, 52, 53
    sCC = 54
    sL0, sL1, sL2, sL3, sL4, sL5, sL6 = 55, 56, 57, 58, 59, 60, 61
    sMF, sMP = 62, 64
    sA, sBB, sNV = 66, 67, 68
    sOB, sCNT, sRN = 69, 70, 71
    sPB = 72
    sLH, sDT, sROLE = 73, 74, 75
    sC0 = 76
    sST = 78
    nstamp = [0]

    def stamp():
        if not STAMP:
            return
        i = nstamp[0]
        nstamp[0] += 1
        assert i < 8
        e("s_memtime s[94:95]")
        e("s_memrealtime s[96:97]")
        e("s_waitcnt lgkmcnt(0)")
        e("s_mov_b32 s%d, s94" % (sST + 2 * i))
        e("s_mov_b32 s%d, s96" % (sST + 2 * i + 1))

    vR, vG = 10, 11
    vGAM, vBET = 12, 14
    vPO = 16

    e.c("entry")
    e("s_cmp_ge_u32 s2, 256")
    e("s_cbranch_scc1 L_end")
    e("s_load_dwordx8 s[4:11], s[0:1], 0")
    e("s_load_dwordx4 s[12:15], s[0:1], 32")
    e("s_load_dwordx2 s[16:17], s[0:1], 48")
    e("v_lshrrev_b32 v1, 6, v0")
    e("v_mov_b32 v19, v0")
    e("v_and_b32 v0, 63, v0")
    e("s_and_b32 s%d, s2, 7" % sT0)
    e("v_readfirstlane_b32 s%d, v1" % sWAVE)
    e("s_lshr_b32 s%d, s2, 3" % sT1)
    if opts.get("map2"):
        e("s_lshr_b32 s%d, s%d, 3" % (sNT, sT1))
        e("s_and_b32 s%d, s%d, 7" % (sT1, sT1))
    else:
        e("s_and_b32 s%d, s%d, 3" % (sNT, sT1))
        e("s_lshr_b32 s%d, s%d, 2" % (sT1, sT1))
    e("s_lshl_b32 s%d, s%d, 3" % (sGM, sT0))
    e("s_add_u32 s%d, s%d, s%d" % (sGM, sGM, sT1))
    e("s_lshr_b32 s%d, s%d, 5" % (sB, sGM))
    e("s_lshr_b32 s%d, s%d, 2" % (sROLE, sWAVE))
    e("s_and_b32 s%d, s%d, 3" % (sWAVE, sWAVE))
    e("s_and_b32 s%d, s%d, 31" % (sST_, sGM))
    e("s_mul_i32 s%d, s%d, %d" % (sXB, sB, T * 512))
    e("s_mul_i32 s%d, s%d, %d" % (sT0, sST_, 2 * TROWS * 512))
    e("s_add_u32 s%d, s%d, s%d" % (sXB, sXB, sT0))
    e("s_lshl_b32 s%d, s%d, 7" % (sN2, sNT))
    vLW, vXO, vSL, vSO = 1, 2, 3, 5
    sMW, sMX, sWC, sX1, sS2, sSI, sSO_ = sL0, sL1, sL2, sL3, sL4, sL5, sL6
    e("v_lshrrev_b32 v20, 3, v0")
    e("v_and_b32 v21, 7, v0")
    e("v_lshlrev_b32 v22, 11, v20")
    e("v_lshlrev_b32 v23, 4, v21")
    e("v_add_u32 v%d, v22, v23" % vXO)
    e("s_lshl_b32 s%d, s%d, 14" % (sT0, sWAVE))
    e("s_add_u32 s%d, s%d, s%d" % (sX1, sXB, sT0))
    e("s_mul_i32 s%d, s%d, %d" % (sMX, sWAVE, YBLK))
    e("v_lshrrev_b32 v22, 1, v0")
    e("v_and_b32 v22, 3, v22")
    e("v_and_b32 v23, 1, v0")
    e("v_lshrrev_b32 v24, 1, v20")
    e("v_and_b32 v24, 1, v24")
    e("s_and_b32 s%d, s%d, 1" % (sT0, sWAVE))
    e("s_lshl_b32 s%d, s%d, 1" % (sT0, sT0))
    e("v_or_b32 v24, s%d, v24" % sT0)
    e("v_xor_b32 v22, v22, v24")
    e("v_lshlrev_b32 v24, 9, v20")
    e("v_lshlrev_b32 v22, 5, v22")
    e("v_lshlrev_b32 v23, 4, v23")
    e("v_add3_u32 v24, v24, v22, v23")
    e("s_lshl_b32 s%d, s%d, 12" % (sT0, sWAVE))
    e("v_add_u32 v%d, s%d, v24" % (vLW, sT0))
    e("s_lshl_b32 s%d, s%d, 10" % (sMW, sWAVE))
    e("s_mov_b32 s%d, s%d" % (sWC, sN2))
    e("s_mov_b32 s%d, 0" % sCC)

    e("s_waitcnt lgkmcnt(0)")
    for (srd, p, nbytes) in ((SX, 4, X_BYTES), (SW, 6, W_BYTES)):
        e("s_mov_b32 s%d, s%d" % (srd, p))
        e("s_and_b32 s%d, s%d, 0xffff" % (srd + 1, p + 1))
        e("s_mov_b32 s%d, %d" % (srd + 2, nbytes))
        e("s_mov_b32 s%d, 0x00020000" % (srd + 3))

    def more_srds():
        for (srd, p, nbytes) in ((SO, 12, OUT_BYTES), (SP, 16, PART_BYTES)):
            e("s_mov_b32 s%d, s%d" % (srd, p))
            e("s_and_b32 s%d, s%d, 0xffff" % (srd + 1, p + 1))
            e("s_mov_b32 s%d, %d" % (srd + 2, nbytes))
            e("s_mov_b32 s%d, 0x00020000" % (srd + 3))
        for (srd, off, nbytes) in ((SG, GS_OFF, GS_BYTES), (SS, S_OFF, S_BYTES)):
            e("s_add_u32 s%d, s16, %d" % (srd, off))
            e("s_addc_u32 s%d, s17, 0" % (srd + 1))
            e("s_and_b32 s%d, s%d, 0xffff" % (srd + 1, srd + 1))
            e("s_mov_b32 s%d, %d" % (srd + 2, nbytes))
            e("s_mov_b32 s%d, 0x00020000" % (srd + 3))

    def epi_setup():
        e("v_and_b32 v%d, 15, v0" % vR)
        e("v_lshrrev_b32 v%d, 4, v0" % vG)
        e("s_lshl_b32 s%d, s%d, 5" % (sT2, sWAVE))
        e("s_add_u32 s%d, s%d, s%d" % (sT2, sT2, sN2))
        e("v_lshlrev_b32 v17, 3, v%d" % vG)
        e("v_add_u32 v17, s%d, v17" % sT2)
        e("global_load_dwordx2 v[%d:%d], v17, s[8:9]" % (vGAM, vGAM + 1))
        e("global_load_dwordx2 v[%d:%d], v17, s[10:11]" % (vBET, vBET + 1))
        e("s_lshl_b32 s%d, s%d, 4" % (sPB, sB))
        e("s_lshl_b32 s%d, s%d, 2" % (sT2, sNT))
        e("s_add_u32 s%d, s%d, s%d" % (sPB, sPB, sT2))
        e("s_add_u32 s%d, s%d, s%d" % (sPB, sPB, sWAVE))
        e("s_lshl_b32 s%d, s%d, 12" % (sPB, sPB))
        e("v_lshlrev_b32 v%d, 4, v%d" % (vPO, vG))

    e("s_cmp_eq_u32 s%d, 0" % sROLE)
    e("s_cbranch_scc1 L_consumer")
    idx_c = len(e.lines)
    e.label("L_consumer")

    vX = [1, 2]
    vXD = [[3, 4], [5, 6]]
    vY = 195
    vW = [7, 8, 9]
    sSQ = sL5
    ACCB, ACCC, ACCA = 20, 52, 84
    WIN = 116
    WF = [176, 180, 184, 188]
    sG0, sG1, sGD, sSL = sL0, sL1, sL2, sL3
    e.c("consumer setup")
    stamp()
    if opts.get("cpf", 1):
        e("s_getpc_b64 s[%d:%d]" % (sMF, sMF + 1))
        e.label("L_pc")
        e("s_sub_u32 s%d, s%d, L_pc-%s_kernel" % (sMF, sMF, NAME))
        e("s_subb_u32 s%d, s%d, 0" % (sMF + 1, sMF + 1))
        e("v_lshlrev_b32 v194, 7, v19")
        e("v_min_u32 v194, L_end-%s_kernel, v194" % NAME)
        e("global_load_dword v193, v194, s[%d:%d]" % (sMF, sMF + 1))
        e("v_lshlrev_b32 v194, 4, v19")
        e("v_add_u32 v194, 0x8000, v194")
        e("v_min_u32 v194, L_end-%s_kernel, v194" % NAME)
        e("global_load_dword v193, v194, s[%d:%d]" % (sMF, sMF + 1))
    e("s_setprio %d" % opts.get("cprio", 2))
    more_srds()
    e("s_lshr_b32 s%d, s2, 4" % sT0)
    e("s_lshr_b32 s%d, s%d, 3" % (sT1, sT0))
    e("s_and_b32 s%d, s%d, 7" % (sT2, sT0))
    e("s_lshl_b32 s%d, s%d, 2" % (sT2, sT2))
    e("s_add_u32 s%d, s%d, s%d" % (sT2, sT2, sT1))
    e("s_lshl_b32 s%d, s%d, 17" % (sT2, sT2))
    e("s_and_b32 s%d, s2, 15" % sT1)
    e("s_lshl_b32 s%d, s%d, 13" % (sT1, sT1))
    e("s_add_u32 s%d, s%d, s%d" % (sG0, sT2, sT1))
    e("s_lshl_b32 s%d, s%d, 17" % (sT0, sT0))
    e("s_add_u32 s%d, s%d, s%d" % (sGD, sT0, sT1))
    e("s_add_u32 s%d, s%d, %d" % (sG1, sG0, 2 * 131072))
    e("v_lshlrev_b32 v18, 5, v19")
    g0, g1, gu = ACCA, ACCA + 8, ACCA + 16

    def gs_loads():
        e("buffer_load_dwordx4 v[%d:%d], v18, s[%d:%d], s%d offen" % (g0, g0 + 3, SW, SW + 3, sG0))
        e("buffer_load_dwordx4 v[%d:%d], v18, s[%d:%d], s%d offen offset:16" % (g0 + 4, g0 + 7, SW, SW + 3, sG0))
        e("buffer_load_dwordx4 v[%d:%d], v18, s[%d:%d], s%d offen" % (g1, g1 + 3, SW, SW + 3, sG1))
        e("buffer_load_dwordx4 v[%d:%d], v18, s[%d:%d], s%d offen offset:16" % (g1 + 4, g1 + 7, SW, SW + 3, sG1))

    if GSL == 0:
        gs_loads()
    epi_setup()
    e("s_lshl_b32 s%d, s%d, 7" % (sSL, sST_))
    e("s_add_u32 s%d, s%d, s%d" % (sSL, sSL, sPB))
    for i in range(64):
        e("v_mov_b32 v%d, 0" % (ACCB + i))
    for i in range(4):
        e("v_mov_b32 v%d, 0" % (196 + i))

    sFL = sLH
    e("s_lshl_b32 s%d, s%d, 7" % (sFL, sGM))
    e("s_lshl_b32 s%d, s%d, 2" % (sT0, sNT))
    e("s_add_u32 s%d, s%d, s%d" % (sFL, sFL, sT0))
    e("s_add_u32 s%d, s%d, %d" % (sFL, sFL, FL_OFF))

    def clear_slot():
        e("v_cmp_eq_u32 vcc, 0, v%d" % vR)
        e("s_and_saveexec_b64 s[%d:%d], vcc" % (sC0, sC0 + 1))
        e("buffer_store_dwordx4 v[196:199], v%d, s[%d:%d], s%d offen sc1" % (vPO, SP, SP + 3, sSL))
        e("buffer_store_dwordx4 v[196:199], v%d, s[%d:%d], s%d offen offset:64 sc1" % (vPO, SP, SP + 3, sSL))
        e("s_mov_b64 exec, 15")
        e("v_lshlrev_b32 v192, 4, v0")
        e("buffer_store_dword v196, v192, s[%d:%d], s%d offen sc1" % (SP, SP + 3, sFL))
        e("s_mov_b64 exec, -1")

    e("v_mul_u32_u24 v17, %d, v%d" % (YBLK, vR))
    e("v_lshlrev_b32 v3, 4, v%d" % vG)
    e("v_add_u32 v%d, v17, v3" % vY)
    for ee in (0, 1):
        if ee == 0:
            e("v_mov_b32 v17, v%d" % vR)
        else:
            e("v_add_u32 v17, 1, v%d" % vR)
        e("v_and_b32 v3, 1, v17")
        e("v_lshrrev_b32 v17, 1, v17")
        e("v_mul_u32_u24 v17, %d, v17" % XBLK)
        e("v_lshlrev_b32 v4, 9, v3")
        e("v_add_u32 v17, v17, v4")
        e("v_lshlrev_b32 v3, 1, v3")
        e("v_xor_b32 v3, v3, v%d" % vG)
        e("v_lshlrev_b32 v3, 4, v3")
        e("v_add_u32 v%d, v17, v3" % vX[ee])
    e("v_lshrrev_b32 v3, 2, v%d" % vR)
    e("v_and_b32 v4, 3, v0")
    e("v_lshrrev_b32 v5, 1, v3")
    e("v_and_b32 v6, 1, v%d" % vG)
    e("v_lshlrev_b32 v6, 1, v6")
    e("v_or_b32 v5, v5, v6")
    e("v_xor_b32 v5, s%d, v5" % sWAVE)
    e("v_lshlrev_b32 v5, 5, v5")
    e("v_lshlrev_b32 v4, 3, v4")
    e("v_add_u32 v5, v5, v4")
    e("v_lshlrev_b32 v3, 7, v3")
    e("v_add_u32 v5, v5, v3")
    e("v_lshlrev_b32 v3, 10, v%d" % vG)
    e("v_add_u32 v%d, v5, v3" % vW[0])
    e("v_add_u32 v%d, 0x10000, v%d" % (vW[1], vW[0]))
    e("v_add_u32 v%d, 0x20000, v%d" % (vW[2], vW[0]))
    e("v_mov_b32 v%d, v%d" % (vXD[0][0], vX[0]))
    e("v_mov_b32 v%d, v%d" % (vXD[0][1], vX[1]))
    e("s_mov_b32 s%d, 0" % sSQ)
    e("s_mov_b32 s%d, 0" % sCC)

    class Q:
        def __init__(self):
            self.q = []

        def issue(self, tag):
            self.q.append(tag)

        def need(self, tags):
            idx = -1
            for i, t in enumerate(self.q):
                if t in tags:
                    idx = i
            if idx < 0:
                return
            n = min(len(self.q) - 1 - idx, 15)
            e("s_waitcnt lgkmcnt(%d)" % n)
            self.q = self.q[len(self.q) - n:] if n > 0 else []

        def drain(self):
            e("s_waitcnt lgkmcnt(0)")
            self.q = []

    q = Q()

    def rd_w(slot, buf, half):
        a = wslot_addr(slot) + half * 512
        r = WF[buf] + 2 * half
        e("ds_read_b64_tr_b16 v[%d:%d], v%d offset:%d" % (r, r + 1, vW[a >> 16], a & 0xffff))
        q.issue(("w", buf, half))

    def rd_x(st, u):
        ee, up = u >> 3, u & 7
        r = WIN + 4 * u
        if st["dyn"] is None:
            e("ds_read_b128 v[%d:%d], v%d offset:%d" % (r, r + 3, vY, st["xoff"] + ee * YBLK + up * 128))
        else:
            e("ds_read_b128 v[%d:%d], v%d offset:%d" % (r, r + 3, vXD[st["dyn"]][ee], up * 64))
        q.issue(("x", u))

    def mfma(acc, t, buf, u):
        q.need({("w", buf, 0), ("w", buf, 1), ("x", u)})
        a = acc + 4 * t
        w = WF[buf]
        x = WIN + 4 * u
        e("v_mfma_f32_16x16x32_bf16 v[%d:%d], v[%d:%d], v[%d:%d], v[%d:%d]" % (a, a + 3, w, w + 3, x, x + 3, a, a + 3))

    def groups_of(st):
        return [(0, 1), (2, 3), (4, 5), (6, 7)] if st["n"] == 8 else [(0,), (1, 2), (3, 4), (5, 6)]

    def wreads(st, k):
        out = []
        for j, tap in enumerate(groups_of(st)[k]):
            for h in (0, 1):
                out.append(("w", st["slots"][tap], 2 * (k & 1) + j, h))
        return out

    def do_read(st, rd):
        if rd[0] == "w":
            rd_w(rd[1], rd[2], rd[3])
        else:
            rd_x(st, rd[1])

    def next_prefetch(cur, nxt):
        a = groups_of(cur)[3][0]
        ws = wreads(nxt, 0)
        xs = []
        for m in range(9):
            pos = -1 if m < a else 2 * (m - a)
            xs.append((pos, ("x", m)))
        return [(-1, ws[0]), (-1, ws[1]), xs[0], xs[1]] + [(-1, r) for r in ws[2:]] + xs[2:]

    def stage(cur, nxt, with_mfma=True, only_last=False, pre_last=None, fill=None):
        gs = groups_of(cur)
        loaded = 9
        for k in range(4):
            if only_last and k < 3:
                continue
            taps = gs[k]
            seqm = [(t, tap) for t in range(8) for tap in taps]
            if k < 3:
                nt = gs[k + 1]
                hi = nt[-1] + 7
                pend = [(-1, cur, r) for r in wreads(cur, k + 1)]
                pend += [(-1, cur, ("x", u)) for u in range(loaded, hi + 1)]
                loaded = max(loaded, hi + 1)
            else:
                if pre_last is not None:
                    pre_last()
                q.drain()
                e("s_barrier")
                pend = [(pos, nxt, r) for (pos, r) in next_prefetch(cur, nxt)]
            for pos, (t, tap) in enumerate(seqm):
                if with_mfma:
                    mfma(cur["acc"], t, 2 * (k & 1) + taps.index(tap), t + tap)
                did = False
                for j, (ep, st, r) in enumerate(pend):
                    if ep <= pos:
                        do_read(st, r)
                        pend.pop(j)
                        did = True
                        break
                if fill:
                    for _ in range(1 if did else 2):
                        if fill:
                            e(fill.pop(0))
            for (ep, st, r) in pend:
                do_read(st, r)

    P1 = []
    tn = 0
    for j in range(4):
        for kh in range(2):
            n = 7 if j == 3 else 8
            P1.append(dict(acc=(ACCB, ACCC, ACCB, ACCC)[j], dyn=None, xoff=(j & 1) * YBUF + kh * 64, n=n, j=j, kh=kh,
                           slots=[(tn + i) % 31 for i in range(n)]))
            tn += n
    assert tn == 62
    P2 = [dict(acc=ACCA, dyn=j & 1, n=8, slots=list(range(8 * j, 8 * j + 8))) for j in range(4)]

    def itstamp(base, sh=2):
        if not opts.get("itstamp"):
            return
        e("s_memtime s[94:95]")
        e("s_lshl_b32 s96, s2, 2")
        e("s_add_u32 s96, s96, s%d" % sWAVE)
        e("s_lshl_b32 s96, s96, 7")
        e("s_add_u32 s96, s96, 0x%x" % (STAMP_OFF + (2 << 20) + 4 * base))
        e("s_lshl_b32 s97, s%d, %d" % (sCC, sh))
        e("s_add_u32 s96, s96, s97")
        e("s_waitcnt lgkmcnt(0)")
        e("v_mov_b32 v192, s96")
        e("v_mov_b32 v193, s94")
        e("global_store_dword v192, v193, s[16:17]")

    def gs_math():
        e("s_waitcnt vmcnt(0)")
        for k in range(8):
            u = gu + 4 * (k % 2)
            e("v_lshlrev_b32 v%d, 16, v%d" % (u, g0 + k))
            e("v_and_b32 v%d, 0xffff0000, v%d" % (u + 1, g0 + k))
            e("v_lshlrev_b32 v%d, 16, v%d" % (u + 2, g1 + k))
            e("v_and_b32 v%d, 0xffff0000, v%d" % (u + 3, g1 + k))
            e("v_pk_add_f32 v[%d:%d], v[%d:%d], v[%d:%d] neg_lo:[0,1] neg_hi:[0,1]" % (u, u + 1, u, u + 1, u + 2, u + 3))
            e("v_cvt_pk_bf16_f32 v%d, v%d, v%d" % (g0 + k, u, u + 1))
        e("buffer_store_dwordx4 v[%d:%d], v18, s[%d:%d], s%d offen sc1" % (g0, g0 + 3, SG, SG + 3, sGD))
        e("buffer_store_dwordx4 v[%d:%d], v18, s[%d:%d], s%d offen offset:16 sc1" % (g0 + 4, g0 + 7, SG, SG + 3, sGD))
        clear_slot()

    def signal(lab, p2):
        if p2:
            e("s_cmp_lg_u32 s%d, 0" % sCC)
            e("s_cbranch_scc1 %s" % lab)
        else:
            e("s_cmp_eq_u32 s%d, 0" % sCC)
            e("s_cbranch_scc1 %s" % lab)
        e("s_cmp_lg_u32 s%d, 0" % sWAVE)
        e("s_cbranch_scc1 %s" % lab)
        if p2:
            e("v_mov_b32 v192, 48")
        else:
            e("s_lshl_b32 s%d, s%d, 4" % (sT0, sCC))
            e("s_sub_u32 s%d, s%d, 16" % (sT0, sT0))
            e("v_mov_b32 v192, s%d" % sT0)
        e("v_mov_b32 v193, 1")
        e("s_mov_b64 exec, 1")
        e("buffer_store_dword v193, v192, s[%d:%d], s%d offen sc1" % (SP, SP + 3, sFL))
        if not p2:
            e("s_cmp_lg_u32 s%d, 1" % sCC)
            e("s_cbranch_scc1 %s_x" % lab)
            e("global_atomic_add v192, v193, s[14:15]")
            e.label(lab + "_x")
        e("s_mov_b64 exec, -1")
        e("s_nop 3")
        e.label(lab)

    if opts.get("xt"):
        e("s_lshl_b32 s%d, s%d, 2" % (sT1, sNT))
        e("s_add_u32 s%d, s%d, s%d" % (sT1, sT1, sWAVE))
        e("s_lshl_b32 s%d, s%d, 9" % (sT1, sT1))
        e("s_add_u32 s%d, s%d, s%d" % (sL6, sXB, sT1))
        e("v_min_u32 v19, 33, v0")
        e("v_lshlrev_b32 v19, 13, v19")
    e.c("first barrier + initial reads")
    stage(P1[7], P1[0], with_mfma=False, only_last=True)
    stamp()
    itstamp(0)
    if GSL == 1:
        gs_loads()
    e.label("L_p1")
    for j in range(8):
        e.c("pass1 stage %d" % j)
        if j < 7:
            stage(P1[j], P1[j + 1])
        else:
            qsave = list(q.q)
            e("s_cmp_eq_u32 s%d, 3" % sCC)
            e("s_cbranch_scc1 L_p1_last")
            stage(P1[7], P1[0])
        if j == 3:
            e("s_cmp_lg_u32 s%d, 0" % sCC)
            e("s_cbranch_scc1 L_nogs")
            if GSL == 2:
                gs_loads()
            else:
                gs_math()
            e.label("L_nogs")
            signal("L_nosig", False)
            if opts.get("xt"):
                e("s_add_u32 s%d, s%d, 128" % (sL6, sL6))
                e("buffer_load_dword v194, v19, s[%d:%d], s%d offen" % (SX, SX + 3, sL6))
            itstamp(1, 3)
    e("s_cmp_lg_u32 s%d, 0" % sCC)
    e("s_cbranch_scc1 L_nodr")
    e("s_waitcnt vmcnt(0)")
    e.label("L_nodr")
    if GSL == 2:
        e("s_cmp_lg_u32 s%d, 0" % sCC)
        e("s_cbranch_scc1 L_nogs2")
        gs_math()
        e.label("L_nogs2")
    itstamp(2, 3)
    e("s_add_u32 s%d, s%d, 1" % (sCC, sCC))
    e("s_branch L_p1")
    e.label("L_p1_last")
    q.q = qsave
    stage(P1[7], P2[0])
    itstamp(2, 3)

    def pk(op, d, a, b, c=None, mods=""):
        s_ = "%s v[%d:%d], v[%d:%d], v[%d:%d]" % (op, d, d + 1, a, a + 1, b, b + 1)
        if c is not None:
            s_ += ", v[%d:%d]" % (c, c + 1)
        e(s_ + mods)

    NEG = " neg_lo:[0,1] neg_hi:[0,1]"
    NEG2 = " neg_lo:[1,1] neg_hi:[1,1]"
    for r_ in range(4):
        e("v_mov_b32_dpp v%d, v%d row_shl:1 row_mask:0xf bank_mask:0xf bound_ctrl:0" % (196 + r_, ACCB + r_))
    e("s_nop 3")
    for t in range(8):
        nxt_ = ACCB + 4 * (t + 1) if t < 7 else 196
        for hh in (0, 2):
            pk("v_pk_add_f32", ACCA + 4 * t + hh, ACCC + 4 * t + hh, nxt_ + hh)
        for hh in (0, 2):
            pk("v_pk_add_f32", ACCB + 4 * t + hh, ACCB + 4 * t + hh, ACCC + 4 * t + hh)
    vS, vM, vPV, vT = ACCC, ACCC + 4, ACCC + 8, ACCC + 12
    for r_ in range(4):
        e("v_mov_b32_dpp v%d, v%d row_newbcast:0 row_mask:0xf bank_mask:0xf" % (vPV + r_, ACCB + r_))
    fill = ["v_mov_b32 v%d, 0" % (vS + r_) for r_ in range(8)]
    for t in range(8):
        tt = vT + 4 * (t & 1)
        fill += ["v_sub_f32 v%d, v%d, v%d" % (tt + r_, ACCB + 4 * t + r_, vPV + r_) for r_ in range(4)]
        fill += ["v_add_f32 v%d, v%d, v%d" % (vS + r_, vS + r_, tt + r_) for r_ in range(4)]
        fill += ["v_fmac_f32 v%d, v%d, v%d" % (vM + r_, tt + r_, tt + r_) for r_ in range(4)]
    stamp()
    e("s_mov_b32 s%d, 0" % sCC)

    def pre(j):
        e("s_add_u32 s%d, s%d, %d" % (sSQ, sSQ, SEQ))
        e("s_cmp_ge_u32 s%d, %d" % (sSQ, 3 * SEQ))
        e("s_cselect_b32 s%d, 0, s%d" % (sSQ, sSQ))
        s_ = vXD[(j + 1) & 1]
        e("v_add_u32 v%d, s%d, v%d" % (s_[0], sSQ, vX[0]))
        e("v_add_u32 v%d, s%d, v%d" % (s_[1], sSQ, vX[1]))

    e.c("pass2 first stage (peeled, carries the statistics of the even rows)")
    qsave2 = list(q.q)
    stage(P2[0], P2[1], pre_last=lambda: pre(0), fill=fill)
    for f_ in fill:
        e(f_)
    e("s_branch L_p2_s1")
    q.q = qsave2
    e.label("L_p2")
    for j in range(4):
        e.c("pass2 stage %d" % j)
        if j == 1:
            e.label("L_p2_s1")
        stage(P2[j], P2[(j + 1) % 4], pre_last=lambda j=j: pre(j))
    signal("L_nosig2", True)
    itstamp(9)
    e("s_add_u32 s%d, s%d, 1" % (sCC, sCC))
    e("s_cmp_lt_u32 s%d, 4" % sCC)
    e("s_cbranch_scc1 L_p2")

    vP = WIN + 20
    vGF, vBF = WIN + 36, WIN + 40
    vCA, vCB = WIN + 44, WIN + 48
    vK0, vK1, vONE = WIN + 52, WIN + 54, WIN + 56
    vZ = WIN
    vN1 = 17

    def masks():
        e("s_cmp_eq_u32 s%d, 31" % sST_)
        e("s_cselect_b32 s%d, %d, 16" % (sA, LAST_VALID // 16))
        e("s_cselect_b32 s%d, %d, 15" % (sBB, LAST_VALID // 16))
        e("s_mov_b32 s%d, 0x%08x" % (sRN, f32(1.0 / TROWS)))
        e("s_cselect_b32 s%d, 0x%08x, s%d" % (sRN, f32(1.0 / LAST_VALID), sRN))
        e("v_cmp_gt_u32 s[%d:%d], s%d, v%d" % (sMF, sMF + 1, sA, vR))
        e("v_cmp_gt_u32 s[%d:%d], s%d, v%d" % (sMP, sMP + 1, sBB, vR))

    assert LAST_VALID % 16 == 0 and TROWS == 255

    def dpp_reduce(base, n):
        for sh in (8, 4, 2, 1):
            for i in range(n):
                e("v_add_f32_dpp v%d, v%d, v%d row_ror:%d row_mask:0xf bank_mask:0xf" % (base + i, base + i, base + i, sh))

    FLAG = 40960
    MAGIC = 0x5a5a1234
    c0 = -2.0 * math.log2(math.e) * math.sqrt(2.0 / math.pi)
    c1 = c0 * 0.044715

    YB = 65536
    CO = FLAG
    OST = ["", " sc1", " nt", " sc0 sc1", " sc1 nt", " sc0 sc1 nt"][opts.get("ost", 1)]
    vY8 = ACCA
    vA8, vB8 = WIN + 20, WIN + 28

    def out_setup():
        e("s_mul_i32 s%d, s%d, %d" % (sOB, sB, L * 512))
        e("s_mul_i32 s%d, s%d, %d" % (sT1, sST_, TROWS * 512))
        e("s_add_u32 s%d, s%d, s%d" % (sOB, sOB, sT1))
        e("s_add_u32 s%d, s%d, s%d" % (sOB, sOB, sN2))
        e("s_lshl_b32 s%d, s%d, 2" % (sT0, sROLE))
        e("s_add_u32 s%d, s%d, s%d" % (sT0, sT0, sWAVE))
        e("s_lshl_b32 s%d, s%d, 5" % (sT1, sT0))
        e("v_lshrrev_b32 v7, 3, v0")
        e("v_add_u32 v7, s%d, v7" % sT1)
        e("v_and_b32 v3, 7, v0")
        e("v_lshlrev_b32 v4, 9, v7")
        e("v_lshlrev_b32 v8, 4, v3")
        e("v_add_u32 v4, v4, v8")
        e("v_lshlrev_b32 v2, 5, v3")
        e("v_add_u32 v2, %d, v2" % CO)
        e("v_lshlrev_b32 v8, 8, v7")
        e("v_add_u32 v8, %d, v8" % YB)
        e("v_lshlrev_b32 v3, 1, v3")
        e("s_lshl_b32 s%d, s%d, 1" % (sT0, sT0))
        for k in range(2):
            for h in range(2):
                d = 176 + 2 * k + h
                e("v_or_b32 v%d, %d, v3" % (d, h))
                e("s_add_u32 s%d, s%d, %d" % (sT1, sT0, k))
                e("v_xor_b32 v%d, s%d, v%d" % (d, sT1, d))
                e("v_lshlrev_b32 v%d, 4, v%d" % (d, d))
                e("v_add_u32 v%d, v%d, v8" % (d, d))
        for k in (0, 1):
            e("v_mov_b32 v%d, 0x%08x" % (vK0 + k, f32(c0)))
            e("v_mov_b32 v%d, 0x%08x" % (vK1 + k, f32(c1)))
            e("v_mov_b32 v%d, 1.0" % (vONE + k))
        e("v_mov_b32 v6, %d" % (CO + 512))
        e("s_cmp_eq_u32 s%d, 31" % sST_)
        e("s_movk_i32 s%d, %d" % (sNV, TROWS))
        e("s_cselect_b32 s%d, %d, s%d" % (sNV, LAST_VALID, sNV))

    def y_reads():
        for i in range(4):
            for h in range(2):
                r_ = vY8 + 8 * i + 4 * h
                e("ds_read_b128 v[%d:%d], v%d offset:%d" % (r_, r_ + 3, 176 + 2 * (i >> 1) + h, 8 * i * 256))

    def sweep():
        e("buffer_load_dwordx4 v[%d:%d], v1, s[%d:%d], s%d offen sc1" % (vP, vP + 3, SP, SP + 3, sPB))
        e("buffer_load_dwordx4 v[%d:%d], v1, s[%d:%d], s%d offen offset:64 sc1" % (vP + 4, vP + 7, SP, SP + 3, sPB))
        e("buffer_load_dwordx4 v[%d:%d], v1, s[%d:%d], s%d offen offset:2048 sc1" % (vP + 8, vP + 11, SP, SP + 3, sPB))
        e("buffer_load_dwordx4 v[%d:%d], v1, s[%d:%d], s%d offen offset:2112 sc1" % (vP + 12, vP + 15, SP, SP + 3, sPB))

    sYB = sL6
    e.c("epilogue")
    e("s_mov_b32 s%d, %d" % (sYB, YB))
    e("s_waitcnt lgkmcnt(0) vmcnt(0)")
    stamp()
    if opts.get("esw", 0):
        e("v_lshlrev_b32 v1, 7, v%d" % vR)
        e("v_add_u32 v1, v1, v%d" % vPO)
        sweep()
    masks()
    for t in range(8):
        if t == 7:
            e("s_mov_b64 exec, s[%d:%d]" % (sMP, sMP + 1))
        tt = vT + 4 * (t & 1)
        for hh in (0, 2):
            pk("v_pk_add_f32", tt + hh, ACCA + 4 * t + hh, vPV + hh, mods=NEG)
        for hh in (0, 2):
            pk("v_pk_add_f32", vS + hh, vS + hh, tt + hh)
            pk("v_pk_fma_f32", vM + hh, tt + hh, tt + hh, vM + hh)
    e("s_mov_b64 exec, -1")
    for r_ in range(8):
        e("v_cndmask_b32 v%d, 0, v%d, s[%d:%d]" % (vS + r_, vS + r_, sMF, sMF + 1))
    dpp_reduce(vS, 8)
    for r_ in range(4):
        e("v_mul_f32 v%d, s%d, v%d" % (vT + r_, sRN, vS + r_))
    for r_ in range(4):
        e("v_fma_f32 v%d, -v%d, v%d, v%d" % (vM + r_, vT + r_, vS + r_, vM + r_))
        e("v_add_f32 v%d, v%d, v%d" % (vS + r_, vPV + r_, vT + r_))
    for r_ in range(4):
        e("v_max_f32 v%d, 0, v%d" % (vM + r_, vM + r_))
    for r_ in range(8):
        e("v_or_b32 v%d, 1, v%d" % (vS + r_, vS + r_))
    e("v_cmp_eq_u32 vcc, 0, v%d" % vR)
    e("s_and_saveexec_b64 s[%d:%d], vcc" % (sC0, sC0 + 1))
    e("buffer_store_dwordx4 v[%d:%d], v%d, s[%d:%d], s%d offen sc1" % (vS, vS + 3, vPO, SP, SP + 3, sSL))
    e("buffer_store_dwordx4 v[%d:%d], v%d, s[%d:%d], s%d offen offset:64 sc1" % (vM, vM + 3, vPO, SP, SP + 3, sSL))
    e("s_mov_b64 exec, -1")
    if not opts.get("esw", 0):
        e("v_lshlrev_b32 v1, 7, v%d" % vR)
        e("v_add_u32 v1, v1, v%d" % vPO)
        sweep()
    stamp()
    e("s_lshl_b32 s%d, s%d, 2" % (sT0, sWAVE))
    e("v_add_u32 v5, s%d, v%d" % (sT0, vG))
    e("v_xor_b32 v5, v5, v%d" % vR)
    e("v_lshlrev_b32 v5, 4, v5")
    e("v_lshlrev_b32 v3, 12, v%d" % vR)
    e("v_add3_u32 v5, v5, v3, s%d" % sYB)
    for t in range(8):
        e("ds_write_b128 v5, v[%d:%d] offset:%d" % (ACCB + 4 * t, ACCB + 4 * t + 3, 2 * t * 256))
        e("ds_write_b128 v5, v[%d:%d] offset:%d" % (ACCA + 4 * t, ACCA + 4 * t + 3, (2 * t + 1) * 256))
    out_setup()
    e("s_lshl_b32 s%d, s%d, 2" % (sT0, sWAVE))
    e("v_add_u32 v9, s%d, v6" % sT0)
    e("v_mov_b32 v3, 0")
    e("ds_write_b32 v9, v3")
    e("s_waitcnt lgkmcnt(0)")
    e("s_barrier")
    y_reads()
    e("v_mov_b32 v%d, 0x%08x" % (vN1, f32(float(TROWS))))
    e("v_mov_b32 v3, 0x%08x" % f32(float(LAST_VALID)))
    e("v_cmp_eq_u32 vcc, 15, v%d" % vR)
    e("v_lshlrev_b32 v%d, 16, v%d" % (vGF + 0, vGAM))
    e("v_and_b32 v%d, 0xffff0000, v%d" % (vGF + 1, vGAM))
    e("v_cndmask_b32 v%d, v%d, v3, vcc" % (vN1, vN1))
    e("v_lshlrev_b32 v%d, 16, v%d" % (vGF + 2, vGAM + 1))
    e("v_and_b32 v%d, 0xffff0000, v%d" % (vGF + 3, vGAM + 1))
    e("v_lshlrev_b32 v%d, 16, v%d" % (vBF + 0, vBET))
    e("v_and_b32 v%d, 0xffff0000, v%d" % (vBF + 1, vBET))
    e("v_lshlrev_b32 v%d, 16, v%d" % (vBF + 2, vBET + 1))
    e("v_and_b32 v%d, 0xffff0000, v%d" % (vBF + 3, vBET + 1))
    sOW0, sOW1 = 56, 58
    e("s_and_b32 s%d, s%d, 15" % (sT0, sST_))
    e("v_cmp_eq_u32 s[%d:%d], s%d, v%d" % (sOW0, sOW0 + 1, sT0, vR))
    e("s_cmp_ge_u32 s%d, 16" % sST_)
    e("s_cselect_b64 s[%d:%d], s[%d:%d], 0" % (sOW1, sOW1 + 1, sOW0, sOW0 + 1))
    e("s_cselect_b64 s[%d:%d], 0, s[%d:%d]" % (sOW0, sOW0 + 1, sOW0, sOW0 + 1))
    e("s_mov_b32 s%d, 0" % sCNT)
    e("s_waitcnt vmcnt(%d)" % (2 if opts.get("esw", 0) else 0))
    e("s_branch L_poll_chk")
    e.label("L_poll")
    if opts.get("mpoll", 1):
        e("s_mov_b64 exec, vcc")
    sweep()
    e("s_mov_b64 exec, -1")
    e("s_waitcnt vmcnt(0)")
    e.label("L_poll_chk")
    e("s_add_u32 s%d, s%d, 1" % (sCNT, sCNT))
    for i in range(8):
        e("v_cndmask_b32 v%d, v%d, v%d, s[%d:%d]" % (vP + i, vP + i, vS + i, sOW0, sOW0 + 1))
        e("v_cndmask_b32 v%d, v%d, v%d, s[%d:%d]" % (vP + 8 + i, vP + 8 + i, vS + i, sOW1, sOW1 + 1))
    e("v_and_b32 v3, v%d, v%d" % (vP, vP + 1))
    for i in range(2, 16, 2):
        e("v_and_b32 v5, v%d, v%d" % (vP + i, vP + i + 1))
        e("v_and_b32 v3, v3, v5")
    e("v_and_b32 v3, 1, v3")
    e("v_cmp_eq_u32 vcc, 0, v3")
    e("s_cmp_ge_u32 s%d, 0x200000" % sCNT)
    e("s_cbranch_scc1 L_poll_done")
    e("s_cbranch_vccnz L_poll")
    e.label("L_poll_done")
    stamp()
    e("s_mov_b32 s%d, 0x%08x" % (sT1, f32(float(TROWS))))
    e("s_mov_b32 s%d, 0x%08x" % (sT2, f32(1.0 / L)))
    for r_ in range(4):
        e("v_mul_f32 v%d, s%d, v%d" % (vS + r_, sT1, vP + r_))
    for r_ in range(4):
        e("v_fmac_f32 v%d, v%d, v%d" % (vS + r_, vN1, vP + 8 + r_))
    for r_ in range(4):
        e("v_add_f32 v%d, v%d, v%d" % (vM + r_, vP + 4 + r_, vP + 12 + r_))
    dpp_reduce(vS, 4)
    for r_ in range(4):
        e("v_mul_f32 v%d, s%d, v%d" % (vS + r_, sT2, vS + r_))
    for r_ in range(4):
        e("v_sub_f32 v%d, v%d, v%d" % (vT + r_, vP + r_, vS + r_))
        e("v_sub_f32 v%d, v%d, v%d" % (vT + 4 + r_, vP + 8 + r_, vS + r_))
    for r_ in range(4):
        e("v_mul_f32 v%d, v%d, v%d" % (vT + r_, vT + r_, vT + r_))
        e("v_mul_f32 v%d, v%d, v%d" % (vT + 4 + r_, vT + 4 + r_, vT + 4 + r_))
    for r_ in range(4):
        e("v_fmac_f32 v%d, s%d, v%d" % (vM + r_, sT1, vT + r_))
    for r_ in range(4):
        e("v_fmac_f32 v%d, v%d, v%d" % (vM + r_, vN1, vT + 4 + r_))
    e("s_nop 0")
    dpp_reduce(vM, 4)
    e("v_mov_b32 v3, 0x%08x" % f32(1e-5))
    for r_ in range(4):
        e("v_fma_f32 v%d, v%d, s%d, v3" % (vM + r_, vM + r_, sT2))
    for r_ in range(4):
        e("v_rsq_f32 v%d, v%d" % (vM + r_, vM + r_))
    e("s_nop 0")
    for r_ in range(4):
        e("v_mul_f32 v%d, v%d, v%d" % (vCA + r_, vM + r_, vGF + r_))
    for r_ in range(4):
        e("v_fma_f32 v%d, -v%d, v%d, v%d" % (vCB + r_, vS + r_, vCA + r_, vBF + r_))
    e("s_lshl_b32 s%d, s%d, 6" % (sT0, sWAVE))
    e("s_add_u32 s%d, s%d, %d" % (sT0, sT0, CO))
    e("v_add_u32 v5, s%d, v%d" % (sT0, vPO))
    e("v_cmp_eq_u32 vcc, 0, v%d" % vR)
    e("v_mov_b32 v3, 0x%08x" % MAGIC)
    e("s_mov_b64 exec, vcc")
    e("ds_write_b128 v5, v[%d:%d]" % (vCA, vCA + 3))
    e("ds_write_b128 v5, v[%d:%d] offset:256" % (vCB, vCB + 3))
    e("ds_write_b32 v9, v3")
    e("s_mov_b64 exec, -1")
    e.label("L_final")
    e("s_mov_b32 s%d, 0" % sCNT)
    e.label("L_mbox")
    e("ds_read_b128 v[%d:%d], v6" % (vZ, vZ + 3))
    e("s_add_u32 s%d, s%d, 1" % (sCNT, sCNT))
    e("s_waitcnt lgkmcnt(0)")
    e("v_and_b32 v%d, v%d, v%d" % (vZ, vZ, vZ + 1))
    e("v_and_b32 v%d, v%d, v%d" % (vZ + 2, vZ + 2, vZ + 3))
    e("v_and_b32 v%d, v%d, v%d" % (vZ, vZ, vZ + 2))
    e("s_cmp_ge_u32 s%d, 0x4000000" % sCNT)
    e("v_readfirstlane_b32 s%d, v%d" % (sT0, vZ))
    e("s_cbranch_scc1 L_mbox_d")
    e("s_cmp_lg_u32 s%d, 0x%08x" % (sT0, MAGIC))
    e("s_cbranch_scc1 L_mbox")
    e.label("L_mbox_d")
    for h in range(2):
        e("ds_read_b128 v[%d:%d], v2 offset:%d" % (vA8 + 4 * h, vA8 + 4 * h + 3, 16 * h))
        e("ds_read_b128 v[%d:%d], v2 offset:%d" % (vB8 + 4 * h, vB8 + 4 * h + 3, 256 + 16 * h))
    e("s_waitcnt lgkmcnt(0)")
    for i in range(4):
        y = vY8 + 8 * i
        z = vZ + 8 * (i % 2)
        o = ACCB + 4 * i
        e("v_add_u32 v3, %d, v7" % (8 * i))
        e("v_cmp_gt_u32 vcc, s%d, v3" % sNV)
        if not DEBUG_H:
            for hh in (0, 2, 4, 6):
                pk("v_pk_fma_f32", y + hh, y + hh, vA8 + hh, vB8 + hh)
            for hh in (0, 2, 4, 6):
                pk("v_pk_mul_f32", z + hh, y + hh, y + hh)
            for hh in (0, 2, 4, 6):
                pk("v_pk_fma_f32", z + hh, z + hh, vK1, vK0)
            for hh in (0, 2, 4, 6):
                pk("v_pk_mul_f32", z + hh, z + hh, y + hh)
            for r_ in range(8):
                e("v_exp_f32 v%d, v%d" % (z + r_, z + r_))
            for hh in (0, 2, 4, 6):
                pk("v_pk_add_f32", z + hh, z + hh, vONE)
            for r_ in range(8):
                e("v_rcp_f32 v%d, v%d" % (z + r_, z + r_))
            for hh in (0, 2, 4, 6):
                pk("v_pk_mul_f32", y + hh, y + hh, z + hh)
        for k in range(4):
            e("v_cvt_pk_bf16_f32 v%d, v%d, v%d" % (o + k, y + 2 * k, y + 2 * k + 1))
        e("s_add_u32 s%d, s%d, %d" % (sT0, sOB, 4096 * i))
        e("s_mov_b64 exec, vcc")
        e("buffer_store_dwordx4 v[%d:%d], v4, s[%d:%d], s%d offen%s" % (o, o + 3, SO, SO + 3, sT0, OST))
        e("s_mov_b64 exec, -1")
    if STAMP:
        e("s_cmp_eq_u32 s%d, 1" % sROLE)
        e("s_cbranch_scc1 L_end")
        stamp()
        e("s_waitcnt vmcnt(0)")
        stamp()
        e("s_lshl_b32 s%d, s2, 2" % sT0)
        e("s_add_u32 s%d, s%d, s%d" % (sT0, sT0, sWAVE))
        e("s_lshl_b32 s%d, s%d, 7" % (sT0, sT0))
        e("s_add_u32 s%d, s%d, 0x%x" % (sT0, sT0, STAMP_OFF))
        e("v_mov_b32 v1, s%d" % sT0)
        e("s_mov_b64 exec, 1")
        for i in range(8):
            e("v_mov_b32 v2, s%d" % (sST + 2 * i))
            e("v_mov_b32 v3, s%d" % (sST + 2 * i + 1))
            e("global_store_dwordx2 v1, v[2:3], s[16:17] offset:%d" % (8 * i))
    e("s_endpgm")

    idx_l = len(e.lines)
    vLW, vXO, vSL, vSO = 1, 2, 3, 5
    RA, UT, RS = 120, 144, 160
    vSI = 4
    sMW, sMX, sWC, sX1, sS2, sSI, sSO_ = sL0, sL1, sL2, sL3, sL4, sL5, sL6
    sG2, sSB, sSQ2, sMS, sID = sA, sBB, sNV, sRN, sOB
    sXB0, sSB0 = sLH, sDT
    e("s_setprio %d" % opts.get("lprio", 0))
    TAPO = [0, 2, 1, 3]

    def late_setup():
        more_srds()
        e("v_lshlrev_b32 v%d, 4, v0" % vSL)
        e("v_lshrrev_b32 v22, 2, v21")
        e("v_mul_u32_u24 v22, %d, v22" % S_CC)
        e("v_lshlrev_b32 v23, 6, v20")
        e("v_add_u32 v22, v22, v23")
        e("v_and_b32 v23, 3, v21")
        e("v_lshlrev_b32 v23, 4, v23")
        e("v_add_u32 v%d, v22, v23" % vSO)
        e("s_mul_i32 s%d, s%d, %d" % (sSB, sGM, S_GM))
        e("s_lshl_b32 s%d, s%d, 10" % (sT0, sWAVE))
        e("s_add_u32 s%d, s%d, s%d" % (sS2, sSB, sT0))
        e("s_lshl_b32 s%d, s%d, 2" % (sID, sWAVE))
        e("s_add_u32 s%d, s%d, s%d" % (sID, sID, sNT))
        e("s_and_b32 s%d, s%d, 1" % (sT0, sID))
        e("s_lshl_b32 s%d, s%d, 5" % (sT1, sT0))
        e("v_xor_b32 v6, s%d, v%d" % (sT1, vSO))
        e("s_lshl_b32 s%d, s%d, 14" % (sT1, sID))
        e("s_add_u32 s%d, s%d, s%d" % (sXB0, sXB, sT1))
        e("s_lshl_b32 s%d, s%d, 9" % (sT1, sID))
        e("s_add_u32 s%d, s%d, s%d" % (sSB0, sSB, sT1))
        e("s_lshr_b32 s%d, s%d, 1" % (sID, sID))
        e("s_lshl_b32 s%d, s%d, 9" % (sSI, sT0))
        e("s_add_u32 s%d, s%d, s%d" % (sSI, sSI, sXB))
        e("s_mul_i32 s%d, s%d, %d" % (sSO_, sT0, S_P))
        e("s_add_u32 s%d, s%d, s%d" % (sSO_, sSO_, sSB))
        e("s_mov_b32 s%d, s%d" % (sG2, sN2))
        e("s_mov_b32 s%d, 0" % sSQ2)
        e("s_mul_i32 s%d, s%d, %d" % (sMS, sWAVE, XBLK))
        e("v_mov_b32 v7, 0")
        e("s_lshl_b32 s%d, s%d, 7" % (sCC, sGM))
        e("s_add_u32 s%d, s%d, %d" % (sCC, sCC, FL_OFF))

    def stage_desc(m):
        return P1[m % 8] if m < 32 else P2[(m - 32) % 4]

    last_use = {}
    wsched = {}
    LEAD = 3
    for m in range(48):
        st = stage_desc(m)
        for i in range(st["n"]):
            sl = st["slots"][i]
            if sl == 31 and sl not in last_use:
                last_use[sl] = 31
            free = last_use[sl] + 1 if sl in last_use else -1
            at = max(free, m - LEAD, -1)
            wsched.setdefault(at, []).append((m, i))
            last_use[sl] = m

    def it_wt(items, m, i, base1, base2):
        st = stage_desc(m)
        items.append(("t", "s_add_u32 m0, s%d, %d" % (sMW, wslot_addr(st["slots"][i]))))
        if m < 32:
            C = m // 8
            off = (C - base1) * 32768 + st["kh"] * 16384 + (4 * i + TAPO[st["j"]]) * 131072
            items.append(("t", "s_add_u32 s%d, s%d, %d" % (sT0, sWC, off)))
            items.append(("v", ("W", m), "buffer_load_dwordx4 v%d, s[%d:%d], s%d offen lds" % (vLW, SW, SW + 3, sT0)))
        else:
            cc, p = divmod(m - 32, 2)
            off = (cc - base2) * 16384 + (p * 8 + i) * 131072
            items.append(("t", "s_add_u32 s%d, s%d, %d" % (sT0, sG2, off)))
            items.append(("v", ("W", m), "buffer_load_dwordx4 v%d, s[%d:%d], s%d offen sc1 lds" % (vLW, SG, SG + 3, sT0)))

    def it_x1(items, sq, base1):
        C, j = divmod(sq, 4)
        rel = TAPO[j] * 512 + (C - base1) * 128
        buf = (j & 1) * YBUF
        tag = ("X", 2 * sq)
        for mm in range(4):
            items.append(("t", "s_add_u32 m0, s%d, %d" % (sMX, buf + 4 * mm * YBLK)))
            items.append(("t", "s_add_u32 s%d, s%d, %d" % (sT0, sX1, mm * 65536 + rel)))
            items.append(("v", tag, "buffer_load_dwordx4 v%d, s[%d:%d], s%d offen lds" % (vXO, SX, SX + 3, sT0)))
        items.append(("t", "s_mov_b32 m0, %d" % (buf + 16 * YBLK)))
        items.append(("t", "s_add_u32 s%d, s%d, %d" % (sT0, sXB, 16 * 16384 + rel)))
        items.append(("t", "s_mov_b32 exec_hi, 0xffffff"))
        items.append(("v", tag, "buffer_load_dwordx4 v%d, s[%d:%d], s%d offen lds" % (vXO, SX, SX + 3, sT0)))
        items.append(("t", "s_mov_b32 exec_hi, -1"))

    def it_x2(items, m, base2, part="all", sq_back=False):
        if m > 47:
            return
        cc, p = divmod(m - 32, 2)
        rel = p * S_P + (cc - base2) * S_CC
        if part in ("all", "main"):
            items.append(("t", "s_add_u32 s%d, s%d, s%d" % (sT1, sMS, sSQ2)))
            for ap in range(2):
                items.append(("t", "s_add_u32 m0, s%d, %d" % (sT1, ap * 4 * XBLK)))
                items.append(("t", "s_add_u32 s%d, s%d, %d" % (sT0, sS2, ap * 4096 + rel)))
                items.append(("v", ("X", m), "buffer_load_dwordx4 v%d, s[%d:%d], s%d offen sc1 lds" % (vSL, SS, SS + 3, sT0)))
        if part in ("all", "halo"):
            items.append(("t", "s_add_u32 m0, s%d, %d" % (sSQ2, 8 * XBLK)))
            items.append(("t", "s_add_u32 s%d, s%d, %d" % (sT0, sSB, 8 * 1024 + rel)))
            items.append(("t", "s_mov_b64 exec, 0xfffffff"))
            items.append(("v", ("X", m), "buffer_load_dwordx4 v%d, s[%d:%d], s%d offen sc1 lds" % (vSL, SS, SS + 3, sT0)))
            items.append(("t", "s_mov_b64 exec, -1"))
            items.append(("t", "s_add_u32 s%d, s%d, %d" % (sSQ2, sSQ2, SEQ)))
            items.append(("t", "s_cmp_ge_u32 s%d, %d" % (sSQ2, 3 * SEQ)))
            items.append(("t", "s_cselect_b32 s%d, 0, s%d" % (sSQ2, sSQ2)))

    def it_sload(items, C, kind):
        ra, rb = RA + 8 * kind, RA + 8 * kind + 4
        if kind < 2:
            items.append(("t", "s_add_u32 s%d, s%d, %d" % (sT0, sXB0, C * 128 + kind * 512)))
            for (r_, o_) in ((ra, 1024), (rb, 2048)):
                items.append(("v", ("SL", C, kind), "buffer_load_dwordx4 v[%d:%d], v%d, s[%d:%d], s%d offen offset:%d" %
                              (r_, r_ + 3, vXO, SX, SX + 3, sT0, o_)))
        else:
            items.append(("t", "s_cmp_lg_u32 s%d, %d" % (sID, C)))
            items.append(("t", "s_cbranch_scc1 L_hl%d" % C))
            items.append(("t", "s_add_u32 s%d, s%d, %d" % (sT0, sSI, 16 * 16384 + C * 128)))
            for (r_, o_) in ((ra, 1024), (rb, 2048)):
                items.append(("t", "buffer_load_dwordx4 v[%d:%d], v%d, s[%d:%d], s%d offen offset:%d" %
                              (r_, r_ + 3, vXO, SX, SX + 3, sT0, o_)))
            items.append(("lab", "L_hl%d" % C))
            items.append(("mark", ("SL", C, kind)))

    def it_sfin(items, C, kind):
        Tt = lambda s_: items.append(("t", s_))
        ra, rb = RA + 8 * kind, RA + 8 * kind + 4
        if kind == 2:
            Tt("s_cmp_lg_u32 s%d, %d" % (sID, C))
            Tt("s_cbranch_scc1 L_hf%d" % C)
            items.append(("wm", ("SL", C, kind)))
        else:
            items.append(("w", [("SL", C, kind)]))
        for k in range(4):
            u = UT + 4 * k
            Tt("v_lshlrev_b32 v%d, 16, v%d" % (u, ra + k))
            Tt("v_and_b32 v%d, 0xffff0000, v%d" % (u + 1, ra + k))
            Tt("v_lshlrev_b32 v%d, 16, v%d" % (u + 2, rb + k))
            Tt("v_and_b32 v%d, 0xffff0000, v%d" % (u + 3, rb + k))
        for k in range(4):
            u = UT + 4 * k
            Tt("v_pk_add_f32 v[%d:%d], v[%d:%d], v[%d:%d] neg_lo:[0,1] neg_hi:[0,1]" % (u, u + 1, u, u + 1, u + 2, u + 3))
        for k in range(4):
            u = UT + 4 * k
            Tt("v_cvt_pk_bf16_f32 v%d, v%d, v%d" % (RS + 4 * kind + k, u, u + 1))
        if kind < 2:
            Tt("s_add_u32 s%d, s%d, %d" % (sT0, sSB0, kind * S_P + 2 * C * S_CC))
            items.append(("v", ("SS", C), "buffer_store_dwordx4 v[%d:%d], v6, s[%d:%d], s%d offen sc1" %
                          (RS + 4 * kind, RS + 4 * kind + 3, SS, SS + 3, sT0)))
        else:
            Tt("s_add_u32 s%d, s%d, %d" % (sT0, sSO_, 2 * C * S_CC + 8192))
            Tt("buffer_store_dwordx4 v[%d:%d], v%d, s[%d:%d], s%d offen sc1" % (RS + 8, RS + 11, vSO, SS, SS + 3, sT0))
            items.append(("lab", "L_hf%d" % C))
            items.append(("mark", ("SH", C)))

    SD = opts.get("sd", 0)
    s_load_at, s_fin_at = {}, {}
    for C in range(4):
        for kind, off in ((0, 2 + SD), (1, 6), (2, 7)):
            s_load_at.setdefault(8 * C + off, []).append((C, kind))
            s_fin_at.setdefault(8 * C + off + 2, []).append((C, kind))

    def barrier(items, n):
        if n <= 47:
            need = [("W", n), ("X", n)]
        else:
            need = "all"
        if n >= 12 and (n - 12) % 8 == 0 and (n - 12) // 8 < 4:
            items.append(("wm", ("SH", (n - 12) // 8)))
        items.append(("w", need))
        items.append(("t", "s_barrier"))

    first_p2 = min(n for n, l in wsched.items() if any(m >= 32 for m, i in l))
    poll_at = {first_p2: 0, 34: 1, 38: 2, 42: 3}

    sFP = sCC

    def poll_issue(items, C):
        if C == 0:
            items.append(("v", ("PG", 0), "global_load_dword v21, v7, s[14:15] sc1"))
        else:
            items.append(("v", ("PL", C), "buffer_load_dwordx4 v[24:27], v7, s[%d:%d], s%d offen offset:%d sc1" % (SP, SP + 3, sFP, 16 * C)))

    def spin(items, lab, first_wait, load, reduce_, target):
        items.append(first_wait)
        items.append(("t", "s_mov_b32 s%d, 0" % sCNT))
        items.append(("t", "s_branch %s_c" % lab))
        items.append(("lab", lab))
        items.append(("t", load))
        items.append(("t", "s_waitcnt vmcnt(0)"))
        items.append(("lab", lab + "_c"))
        for r_ in reduce_:
            items.append(("t", r_))
        items.append(("t", "s_add_u32 s%d, s%d, 1" % (sCNT, sCNT)))
        items.append(("t", "v_readfirstlane_b32 s%d, v21" % sT0))
        items.append(("t", "s_cmp_ge_u32 s%d, 0x200000" % sCNT))
        items.append(("t", "s_cbranch_scc1 %s_d" % lab))
        items.append(("t", "s_cmp_lt_u32 s%d, %d" % (sT0, target)))
        items.append(("t", "s_cbranch_scc1 %s" % lab))
        items.append(("lab", lab + "_d"))

    def poll(items, C):
        fl = "buffer_load_dwordx4 v[24:27], v7, s[%d:%d], s%d offen offset:%d sc1" % (SP, SP + 3, sFP, 16 * C)
        red = ["v_and_b32 v21, v24, v25", "v_and_b32 v22, v26, v27", "v_and_b32 v21, v21, v22"]
        if C == 0:
            spin(items, "L_gpoll", ("w", [("PG", 0)]), "global_load_dword v21, v7, s[14:15] sc1", [], 256)
        else:
            spin(items, "L_fpoll%d" % C, ("w", [("PL", C)]), fl, red, 1)

    def slot_items(n, base1, base2):
        items = []
        if n in poll_at:
            poll(items, poll_at[n])
        if n + 1 in poll_at:
            poll_issue(items, poll_at[n + 1])
        for (C, kind) in s_load_at.get(n, []):
            it_sload(items, C, kind)
        if n % 2 == 0 and n // 2 + 1 < 16 and n >= 0:
            it_x1(items, n // 2 + 1, base1)
        if n == 30:
            it_x2(items, 32, base2)
        elif n == 31:
            it_x2(items, 33, base2, part="main")
        elif n == 32:
            it_x2(items, 33, base2, part="halo")
            it_x2(items, 34, base2)
        elif n > 32:
            it_x2(items, n + 2, base2)
        for (m, i) in wsched.get(n, []):
            it_wt(items, m, i, base1, base2)
        for (C, kind) in s_fin_at.get(n, []):
            it_sfin(items, C, kind)
        barrier(items, n + 1)
        return items

    pro = []
    it_x1(pro, 0, 0)
    assert wsched[-1] == [(m, i) for m in range(3) for i in range(8)]
    for m in range(3):
        st = P1[m]
        assert st["slots"] == list(range(8 * m, 8 * m + 8))
        pro.append(("t", "s_add_u32 m0, s%d, %d" % (sMW, wslot_addr(8 * m))))
        pro.append(("t", "s_add_u32 s%d, s%d, %d" % (sT0, sWC, st["kh"] * 16384 + TAPO[st["j"]] * 131072)))
        pro.append(("t", "s_mov_b32 s%d, 0" % sT1))
        pro.append(("lab", "L_pw%d" % m))
        pro.append(("t", "buffer_load_dwordx4 v%d, s[%d:%d], s%d offen lds" % (vLW, SW, SW + 3, sT0)))
        pro.append(("t", "s_add_u32 m0, m0, %d" % WSTEP))
        pro.append(("t", "s_add_u32 s%d, s%d, %d" % (sT0, sT0, 4 * 131072)))
        pro.append(("t", "s_add_u32 s%d, s%d, 1" % (sT1, sT1)))
        pro.append(("t", "s_cmp_lt_u32 s%d, 8" % sT1))
        pro.append(("t", "s_cbranch_scc1 L_pw%d" % m))
        for i in range(8):
            pro.append(("vq", ("W", m)))
    pro.append(("late",))
    barrier(pro, 0)
    blocks = [pro]
    for n in range(48):
        blocks.append(slot_items(n, 0, 0))
    qv = []
    for items in blocks:
        for k, itx in enumerate(items):
            if itx[0] in ("v", "vq"):
                qv.append(itx[1])
            elif itx[0] == "mark":
                qv.append(("M",) + itx[1])
            elif itx[0] in ("w", "wm"):
                tags = itx[1] if itx[0] == "w" else [("M",) + itx[1]]
                if tags == "all":
                    n, idx = 0, len(qv) - 1
                else:
                    idx = -1
                    for i, t in enumerate(qv):
                        if t in tags:
                            idx = i
                    n = sum(1 for t in qv[idx + 1:] if t[0] != "M") if idx >= 0 else 63
                n = min(n, 63)
                if itx[0] == "w" or itx[1][0] == "SH":
                    if idx >= 0:
                        qv = qv[idx + 1:]
                items[k] = ("wn", n)

    def merge(lists):
        base = lists[0]
        out = []
        for k, itx in enumerate(base):
            if itx[0] == "wn":
                out.append(("wn", min(l[k][1] for l in lists)))
            else:
                for l in lists:
                    assert l[k][0] == itx[0] and l[k][-1] == itx[-1], (l[k], itx)
                out.append(itx)
        return out

    def put(items):
        for itx in items:
            if itx[0] == "t":
                e(itx[1])
            elif itx[0] == "v":
                e(itx[2])
            elif itx[0] == "lab":
                e.label(itx[1])
            elif itx[0] == "drain":
                e("s_waitcnt vmcnt(0)")
            elif itx[0] == "wn":
                e("s_waitcnt vmcnt(%d)" % itx[1])
            elif itx[0] == "late":
                late_setup()

    for blk in blocks:
        put(blk)
    e.c("loader joins the epilogue")
    out_setup()
    e("s_barrier")
    y_reads()
    e("s_branch L_final")
    idx_e = len(e.lines)
    e.lines = e.lines[:idx_c] + e.lines[idx_l:idx_e] + e.lines[idx_c:idx_l]
    e.label("L_end")
    e("s_endpgm")

    hdr = """; Kernarg layout for this problem (56 bytes, ptrs only, base s[0:1]):
;   offset   0: d_in[0] x  shape=(2, 16000, 256) dtype=bfloat16
;   offset   8: d_in[1] w  shape=(31, 256, 256) dtype=bfloat16
;   offset  16: d_in[2] gn_gamma  shape=(256,) dtype=bfloat16
;   offset  24: d_in[3] gn_beta  shape=(256,) dtype=bfloat16
;   offset  32: d_out     shape=(2, 7985, 256) dtype=bfloat16
;   offset  40: d_debug   256 bytes
;   offset  48: d_ws      workspace
; Generated by my own script work/gen11.py.
; conv1d(k=31, stride 2) as an implicit GEMM on bf16 MFMA (fp32 accumulate), using the exact 2-parallel fast-FIR
; identity per tap parity p (E[k]=x[4k+p], O[k]=x[4k+2+p], G0[i]=w[4i+p], G1[i]=w[4i+2+p]):
;   P0=sum E[k+i]G0[i], P1=sum O[k+i]G1[i], Pd=sum (O[k+i]-E[k+i+1])(G0[i]-G1[i])
;   h[2k]=P0[k]+P1[k],  h[2k+1]=Pd[k]+P1[k]+P0[k+1]
; then per-(batch,channel) mean/variance over time (per-tile mean/M2 exchanged through d_ws, combined with Chan's
; formula), affine and tanh-GELU, all in one launch.  256 workgroups (one per CU, tile 255 rows x 64 channels):
; waves 0-3 MFMA consumers, waves 4-7 LDS-DMA loaders.  d_debug[0] counts workgroups that prepared their share.
; @launch grid=(256,1,1) block=(512,1,1) lds=%d
.amdgcn_target "amdgcn-amd-amdhsa--gfx950"
.text
.globl %s_kernel
.p2align 8
.type %s_kernel,@function
%s_kernel:
""" % (LDS_TOTAL, NAME, NAME, NAME)
    ftr = """.section .rodata,"a"
.p2align 6
.amdhsa_kernel %s_kernel
  .amdhsa_next_free_vgpr 200
  .amdhsa_next_free_sgpr 100
  .amdhsa_accum_offset 200
  .amdhsa_group_segment_fixed_size 0
  .amdhsa_kernarg_size 56
  .amdhsa_user_sgpr_count 2
  .amdhsa_user_sgpr_kernarg_segment_ptr 1
  .amdhsa_system_sgpr_workgroup_id_x 1
.end_amdhsa_kernel
""" % NAME
    return hdr + e.text() + ftr


if __name__ == "__main__":
    opts = {}
    out = "cdna_kernels/%s.s" % NAME
    for a in sys.argv[1:]:
        if a.startswith("-o"):
            out = a[2:]
        elif "=" in a:
            k, v = a.split("=")
            opts[k] = int(v)
        else:
            opts[a] = True
    open(out, "w").write(gen(opts))
    print("wrote", out)
```

```python
import sys
import struct
import math

NAME = "standalone__self_sup_conv_stem_wavlm__speech"

B_, T, D, KT = 2, 16000, 256, 31
L = 7985
X_BYTES = B_ * T * D * 2
W_BYTES = KT * D * D * 2
OUT_BYTES = B_ * L * D * 2
TROWS = 255
LAST_VALID = L - 31 * TROWS

YBLK = 1056
YBUF = 16 * YBLK + 7 * 128
XBLK = 1088
SEQ = 8 * XBLK + 7 * 64
WBASE = 2 * YBUF
WSTEP = 4096
LDS_TOTAL = 163840
assert WBASE + 31 * WSTEP <= LDS_TOTAL and 3 * SEQ + WSTEP <= WBASE


def wslot_addr(n):
    return WBASE + n * WSTEP if n < 31 else 3 * SEQ


FL_OFF = 32 * 4096
PART_BYTES = FL_OFF + 64 * 128
GS_OFF = 1 << 20
GS_BYTES = 16 * 131072
S_OFF = 4 << 20
S_CC = 144 * 64
S_P = 8 * S_CC
S_GM = 2 * S_P
S_BYTES = 64 * S_GM
STAMP_OFF = 16 << 20


def f32(x):
    return struct.unpack("<I", struct.pack("<f", x))[0]


class Emit:
    def __init__(self):
        self.lines = []

    def __call__(self, s):
        self.lines.append("    " + s)

    def label(self, s):
        self.lines.append(s + ":")

    def c(self, s):
        self.lines.append("    ; " + s)

    def text(self):
        return "\n".join(self.lines) + "\n"


def gen(opts):
    e = Emit()
    DEBUG_H = opts.get("debug_h", False)
    STAMP = opts.get("stamp", False)
    S0 = opts.get("s0", 1)
    GSL = opts.get("gsl", 0)
    SPLIT = opts.get("split", 1)

    SX, SW, SO, SP, SG, SS = 20, 24, 28, 32, 36, 40
    sWAVE, sNT, sGM, sB, sST_, sXB, sN2 = 44, 45, 46, 47, 48, 49, 50
    sT0, sT1, sT2 = 51, 52, 53
    sCC = 54
    sL0, sL1, sL2, sL3, sL4, sL5, sL6 = 55, 56, 57, 58, 59, 60, 61
    sMF, sMP = 62, 64
    sA, sBB, sNV = 66, 67, 68
    sOB, sCNT, sRN = 69, 70, 71
    sPB = 72
    sLH, sDT, sROLE = 73, 74, 75
    sC0 = 76
    sST = 78
    nstamp = [0]

    def stamp():
        if not STAMP:
            return
        i = nstamp[0]
        nstamp[0] += 1
        assert i < 8
        e("s_memtime s[94:95]")
        e("s_memrealtime s[96:97]")
        e("s_waitcnt lgkmcnt(0)")
        e("s_mov_b32 s%d, s94" % (sST + 2 * i))
        e("s_mov_b32 s%d, s96" % (sST + 2 * i + 1))

    vR, vG = 10, 11
    vGAM, vBET = 12, 14
    vPO = 16

    e.c("entry")
    e("s_cmp_ge_u32 s2, 256")
    e("s_cbranch_scc1 L_end")
    e("s_load_dwordx8 s[4:11], s[0:1], 0")
    e("s_load_dwordx4 s[12:15], s[0:1], 32")
    e("s_load_dwordx2 s[16:17], s[0:1], 48")
    e("v_lshrrev_b32 v1, 6, v0")
    e("v_mov_b32 v19, v0")
    e("v_and_b32 v0, 63, v0")
    e("s_and_b32 s%d, s2, 7" % sT0)
    e("v_readfirstlane_b32 s%d, v1" % sWAVE)
    e("s_lshr_b32 s%d, s2, 3" % sT1)
    if opts.get("map2"):
        e("s_lshr_b32 s%d, s%d, 3" % (sNT, sT1))
        e("s_and_b32 s%d, s%d, 7" % (sT1, sT1))
    else:
        e("s_and_b32 s%d, s%d, 3" % (sNT, sT1))
        e("s_lshr_b32 s%d, s%d, 2" % (sT1, sT1))
    e("s_lshl_b32 s%d, s%d, 3" % (sGM, sT0))
    e("s_add_u32 s%d, s%d, s%d" % (sGM, sGM, sT1))
    e("s_lshr_b32 s%d, s%d, 5" % (sB, sGM))
    e("s_lshr_b32 s%d, s%d, 2" % (sROLE, sWAVE))
    e("s_and_b32 s%d, s%d, 3" % (sWAVE, sWAVE))
    e("s_and_b32 s%d, s%d, 31" % (sST_, sGM))
    e("s_mul_i32 s%d, s%d, %d" % (sXB, sB, T * 512))
    e("s_mul_i32 s%d, s%d, %d" % (sT0, sST_, 2 * TROWS * 512))
    e("s_add_u32 s%d, s%d, s%d" % (sXB, sXB, sT0))
    e("s_lshl_b32 s%d, s%d, 7" % (sN2, sNT))
    vLW, vXO, vSL, vSO = 1, 2, 3, 5
    sMW, sMX, sWC, sX1, sS2, sSI, sSO_ = sL0, sL1, sL2, sL3, sL4, sL5, sL6
    e("v_lshrrev_b32 v20, 3, v0")
    e("v_and_b32 v21, 7, v0")
    e("v_lshlrev_b32 v22, 11, v20")
    e("v_lshlrev_b32 v23, 4, v21")
    e("v_add_u32 v%d, v22, v23" % vXO)
    e("s_lshl_b32 s%d, s%d, 14" % (sT0, sWAVE))
    e("s_add_u32 s%d, s%d, s%d" % (sX1, sXB, sT0))
    e("s_mul_i32 s%d, s%d, %d" % (sMX, sWAVE, YBLK))
    e("v_lshrrev_b32 v22, 1, v0")
    e("v_and_b32 v22, 3, v22")
    e("v_and_b32 v23, 1, v0")
    e("v_lshrrev_b32 v24, 1, v20")
    e("v_and_b32 v24, 1, v24")
    e("s_and_b32 s%d, s%d, 1" % (sT0, sWAVE))
    e("s_lshl_b32 s%d, s%d, 1" % (sT0, sT0))
    e("v_or_b32 v24, s%d, v24" % sT0)
    e("v_xor_b32 v22, v22, v24")
    e("v_lshlrev_b32 v24, 9, v20")
    e("v_lshlrev_b32 v22, 5, v22")
    e("v_lshlrev_b32 v23, 4, v23")
    e("v_add3_u32 v24, v24, v22, v23")
    e("s_lshl_b32 s%d, s%d, 12" % (sT0, sWAVE))
    e("v_add_u32 v%d, s%d, v24" % (vLW, sT0))
    e("s_lshl_b32 s%d, s%d, 10" % (sMW, sWAVE))
    e("s_mov_b32 s%d, s%d" % (sWC, sN2))
    e("s_mov_b32 s%d, 0" % sCC)

    e("s_waitcnt lgkmcnt(0)")
    for (srd, p, nbytes) in ((SX, 4, X_BYTES), (SW, 6, W_BYTES)):
        e("s_mov_b32 s%d, s%d" % (srd, p))
        e("s_and_b32 s%d, s%d, 0xffff" % (srd + 1, p + 1))
        e("s_mov_b32 s%d, %d" % (srd + 2, nbytes))
        e("s_mov_b32 s%d, 0x00020000" % (srd + 3))

    def more_srds():
        for (srd, p, nbytes) in ((SO, 12, OUT_BYTES), (SP, 16, PART_BYTES)):
            e("s_mov_b32 s%d, s%d" % (srd, p))
            e("s_and_b32 s%d, s%d, 0xffff" % (srd + 1, p + 1))
            e("s_mov_b32 s%d, %d" % (srd + 2, nbytes))
            e("s_mov_b32 s%d, 0x00020000" % (srd + 3))
        for (srd, off, nbytes) in ((SG, GS_OFF, GS_BYTES), (SS, S_OFF, S_BYTES)):
            e("s_add_u32 s%d, s16, %d" % (srd, off))
            e("s_addc_u32 s%d, s17, 0" % (srd + 1))
            e("s_and_b32 s%d, s%d, 0xffff" % (srd + 1, srd + 1))
            e("s_mov_b32 s%d, %d" % (srd + 2, nbytes))
            e("s_mov_b32 s%d, 0x00020000" % (srd + 3))

    def epi_setup():
        e("v_and_b32 v%d, 15, v0" % vR)
        e("v_lshrrev_b32 v%d, 4, v0" % vG)
        e("s_lshl_b32 s%d, s%d, 5" % (sT2, sWAVE))
        e("s_add_u32 s%d, s%d, s%d" % (sT2, sT2, sN2))
        e("v_lshlrev_b32 v17, 3, v%d" % vG)
        e("v_add_u32 v17, s%d, v17" % sT2)
        e("global_load_dwordx2 v[%d:%d], v17, s[8:9]" % (vGAM, vGAM + 1))
        e("global_load_dwordx2 v[%d:%d], v17, s[10:11]" % (vBET, vBET + 1))
        e("s_lshl_b32 s%d, s%d, 4" % (sPB, sB))
        e("s_lshl_b32 s%d, s%d, 2" % (sT2, sNT))
        e("s_add_u32 s%d, s%d, s%d" % (sPB, sPB, sT2))
        e("s_add_u32 s%d, s%d, s%d" % (sPB, sPB, sWAVE))
        e("s_lshl_b32 s%d, s%d, 12" % (sPB, sPB))
        e("v_lshlrev_b32 v%d, 4, v%d" % (vPO, vG))

    e("s_cmp_eq_u32 s%d, 0" % sROLE)
    e("s_cbranch_scc1 L_consumer")
    idx_c = len(e.lines)
    e.label("L_consumer")

    vX = [1, 2]
    vXD = [[3, 4], [5, 6]]
    vY = 195
    vW = [7, 8, 9]
    sSQ = sL5
    ACCB, ACCC, ACCA = 20, 52, 84
    WIN = 116
    WF = [176, 180, 184, 188]
    sG0, sG1, sGD, sSL = sL0, sL1, sL2, sL3
    e.c("consumer setup")
    stamp()
    if opts.get("cpf", 1):
        e("s_getpc_b64 s[%d:%d]" % (sMF, sMF + 1))
        e.label("L_pc")
        e("s_sub_u32 s%d, s%d, L_pc-%s_kernel" % (sMF, sMF, NAME))
        e("s_subb_u32 s%d, s%d, 0" % (sMF + 1, sMF + 1))
        e("v_lshlrev_b32 v194, 7, v19")
        e("v_min_u32 v194, L_end-%s_kernel, v194" % NAME)
        e("global_load_dword v193, v194, s[%d:%d]" % (sMF, sMF + 1))
        e("v_lshlrev_b32 v194, 4, v19")
        e("v_add_u32 v194, 0x8000, v194")
        e("v_min_u32 v194, L_end-%s_kernel, v194" % NAME)
        e("global_load_dword v193, v194, s[%d:%d]" % (sMF, sMF + 1))
    e("s_setprio %d" % opts.get("cprio", 2))
    more_srds()
    e("s_lshr_b32 s%d, s2, 4" % sT0)
    e("s_lshr_b32 s%d, s%d, 3" % (sT1, sT0))
    e("s_and_b32 s%d, s%d, 7" % (sT2, sT0))
    e("s_lshl_b32 s%d, s%d, 2" % (sT2, sT2))
    e("s_add_u32 s%d, s%d, s%d" % (sT2, sT2, sT1))
    e("s_lshl_b32 s%d, s%d, 17" % (sT2, sT2))
    e("s_and_b32 s%d, s2, 15" % sT1)
    e("s_lshl_b32 s%d, s%d, 13" % (sT1, sT1))
    e("s_add_u32 s%d, s%d, s%d" % (sG0, sT2, sT1))
    e("s_lshl_b32 s%d, s%d, 17" % (sT0, sT0))
    e("s_add_u32 s%d, s%d, s%d" % (sGD, sT0, sT1))
    e("s_add_u32 s%d, s%d, %d" % (sG1, sG0, 2 * 131072))
    e("v_lshlrev_b32 v18, 5, v19")
    g0, g1, gu = ACCA, ACCA + 8, ACCA + 16

    def gs_loads():
        e("buffer_load_dwordx4 v[%d:%d], v18, s[%d:%d], s%d offen" % (g0, g0 + 3, SW, SW + 3, sG0))
        e("buffer_load_dwordx4 v[%d:%d], v18, s[%d:%d], s%d offen offset:16" % (g0 + 4, g0 + 7, SW, SW + 3, sG0))
        e("buffer_load_dwordx4 v[%d:%d], v18, s[%d:%d], s%d offen" % (g1, g1 + 3, SW, SW + 3, sG1))
        e("buffer_load_dwordx4 v[%d:%d], v18, s[%d:%d], s%d offen offset:16" % (g1 + 4, g1 + 7, SW, SW + 3, sG1))

    if GSL == 0:
        gs_loads()
    epi_setup()
    e("s_lshl_b32 s%d, s%d, 7" % (sSL, sST_))
    e("s_add_u32 s%d, s%d, s%d" % (sSL, sSL, sPB))
    for i in range(64):
        e("v_mov_b32 v%d, 0" % (ACCB + i))
    for i in range(4):
        e("v_mov_b32 v%d, 0" % (196 + i))

    sFL = sLH
    e("s_lshl_b32 s%d, s%d, 7" % (sFL, sGM))
    e("s_lshl_b32 s%d, s%d, 2" % (sT0, sNT))
    e("s_add_u32 s%d, s%d, s%d" % (sFL, sFL, sT0))
    e("s_add_u32 s%d, s%d, %d" % (sFL, sFL, FL_OFF))

    def clear_slot():
        e("v_cmp_eq_u32 vcc, 0, v%d" % vR)
        e("s_and_saveexec_b64 s[%d:%d], vcc" % (sC0, sC0 + 1))
        e("buffer_store_dwordx4 v[196:199], v%d, s[%d:%d], s%d offen sc1" % (vPO, SP, SP + 3, sSL))
        e("buffer_store_dwordx4 v[196:199], v%d, s[%d:%d], s%d offen offset:64 sc1" % (vPO, SP, SP + 3, sSL))
        e("s_mov_b64 exec, 15")
        e("v_lshlrev_b32 v192, 4, v0")
        e("buffer_store_dword v196, v192, s[%d:%d], s%d offen sc1" % (SP, SP + 3, sFL))
        e("s_mov_b64 exec, -1")

    e("v_mul_u32_u24 v17, %d, v%d" % (YBLK, vR))
    e("v_lshlrev_b32 v3, 4, v%d" % vG)
    e("v_add_u32 v%d, v17, v3" % vY)
    for ee in (0, 1):
        if ee == 0:
            e("v_mov_b32 v17, v%d" % vR)
        else:
            e("v_add_u32 v17, 1, v%d" % vR)
        e("v_and_b32 v3, 1, v17")
        e("v_lshrrev_b32 v17, 1, v17")
        e("v_mul_u32_u24 v17, %d, v17" % XBLK)
        e("v_lshlrev_b32 v4, 9, v3")
        e("v_add_u32 v17, v17, v4")
        e("v_lshlrev_b32 v3, 1, v3")
        e("v_xor_b32 v3, v3, v%d" % vG)
        e("v_lshlrev_b32 v3, 4, v3")
        e("v_add_u32 v%d, v17, v3" % vX[ee])
    e("v_lshrrev_b32 v3, 2, v%d" % vR)
    e("v_and_b32 v4, 3, v0")
    e("v_lshrrev_b32 v5, 1, v3")
    e("v_and_b32 v6, 1, v%d" % vG)
    e("v_lshlrev_b32 v6, 1, v6")
    e("v_or_b32 v5, v5, v6")
    e("v_xor_b32 v5, s%d, v5" % sWAVE)
    e("v_lshlrev_b32 v5, 5, v5")
    e("v_lshlrev_b32 v4, 3, v4")
    e("v_add_u32 v5, v5, v4")
    e("v_lshlrev_b32 v3, 7, v3")
    e("v_add_u32 v5, v5, v3")
    e("v_lshlrev_b32 v3, 10, v%d" % vG)
    e("v_add_u32 v%d, v5, v3" % vW[0])
    e("v_add_u32 v%d, 0x10000, v%d" % (vW[1], vW[0]))
    e("v_add_u32 v%d, 0x20000, v%d" % (vW[2], vW[0]))
    e("v_mov_b32 v%d, v%d" % (vXD[0][0], vX[0]))
    e("v_mov_b32 v%d, v%d" % (vXD[0][1], vX[1]))
    e("s_mov_b32 s%d, 0" % sSQ)
    e("s_mov_b32 s%d, 0" % sCC)

    class Q:
        def __init__(self):
            self.q = []

        def issue(self, tag):
            self.q.append(tag)

        def need(self, tags):
            idx = -1
            for i, t in enumerate(self.q):
                if t in tags:
                    idx = i
            if idx < 0:
                return
            n = min(len(self.q) - 1 - idx, 15)
            e("s_waitcnt lgkmcnt(%d)" % n)
            self.q = self.q[len(self.q) - n:] if n > 0 else []

        def drain(self):
            e("s_waitcnt lgkmcnt(0)")
            self.q = []

    q = Q()

    def rd_w(slot, buf, half):
        a = wslot_addr(slot) + half * 512
        r = WF[buf] + 2 * half
        e("ds_read_b64_tr_b16 v[%d:%d], v%d offset:%d" % (r, r + 1, vW[a >> 16], a & 0xffff))
        q.issue(("w", buf, half))

    def rd_x(st, u):
        ee, up = u >> 3, u & 7
        r = WIN + 4 * u
        if st["dyn"] is None:
            e("ds_read_b128 v[%d:%d], v%d offset:%d" % (r, r + 3, vY, st["xoff"] + ee * YBLK + up * 128))
        else:
            e("ds_read_b128 v[%d:%d], v%d offset:%d" % (r, r + 3, vXD[st["dyn"]][ee], up * 64))
        q.issue(("x", u))

    def mfma(acc, t, buf, u):
        q.need({("w", buf, 0), ("w", buf, 1), ("x", u)})
        a = acc + 4 * t
        w = WF[buf]
        x = WIN + 4 * u
        e("v_mfma_f32_16x16x32_bf16 v[%d:%d], v[%d:%d], v[%d:%d], v[%d:%d]" % (a, a + 3, w, w + 3, x, x + 3, a, a + 3))

    def groups_of(st):
        return [(0, 1), (2, 3), (4, 5), (6, 7)] if st["n"] == 8 else [(0,), (1, 2), (3, 4), (5, 6)]

    def wreads(st, k):
        out = []
        for j, tap in enumerate(groups_of(st)[k]):
            for h in (0, 1):
                out.append(("w", st["slots"][tap], 2 * (k & 1) + j, h))
        return out

    def do_read(st, rd):
        if rd[0] == "w":
            rd_w(rd[1], rd[2], rd[3])
        else:
            rd_x(st, rd[1])

    def next_prefetch(cur, nxt):
        a = groups_of(cur)[3][0]
        ws = wreads(nxt, 0)
        xs = []
        for m in range(9):
            pos = -1 if m < a else 2 * (m - a)
            xs.append((pos, ("x", m)))
        return [(-1, ws[0]), (-1, ws[1]), xs[0], xs[1]] + [(-1, r) for r in ws[2:]] + xs[2:]

    def stage(cur, nxt, with_mfma=True, only_last=False, pre_last=None, fill=None):
        gs = groups_of(cur)
        loaded = 9
        for k in range(4):
            if only_last and k < 3:
                continue
            taps = gs[k]
            seqm = [(t, tap) for t in range(8) for tap in taps]
            if k < 3:
                nt = gs[k + 1]
                hi = nt[-1] + 7
                pend = [(-1, cur, r) for r in wreads(cur, k + 1)]
                pend += [(-1, cur, ("x", u)) for u in range(loaded, hi + 1)]
                loaded = max(loaded, hi + 1)
            else:
                if pre_last is not None:
                    pre_last()
                q.drain()
                e("s_barrier")
                pend = [(pos, nxt, r) for (pos, r) in next_prefetch(cur, nxt)]
            for pos, (t, tap) in enumerate(seqm):
                if with_mfma:
                    mfma(cur["acc"], t, 2 * (k & 1) + taps.index(tap), t + tap)
                did = False
                for j, (ep, st, r) in enumerate(pend):
                    if ep <= pos:
                        do_read(st, r)
                        pend.pop(j)
                        did = True
                        break
                if fill:
                    for _ in range(1 if did else 2):
                        if fill:
                            e(fill.pop(0))
            for (ep, st, r) in pend:
                do_read(st, r)

    P1 = []
    tn = 0
    for j in range(4):
        for kh in range(2):
            n = 7 if j == 3 else 8
            P1.append(dict(acc=(ACCB, ACCC, ACCB, ACCC)[j], dyn=None, xoff=(j & 1) * YBUF + kh * 64, n=n, j=j, kh=kh,
                           slots=[(tn + i) % 31 for i in range(n)]))
            tn += n
    assert tn == 62
    P2 = [dict(acc=ACCA, dyn=j & 1, n=8, slots=list(range(8 * j, 8 * j + 8))) for j in range(4)]

    def itstamp(base, sh=2):
        if not opts.get("itstamp"):
            return
        e("s_memtime s[94:95]")
        e("s_lshl_b32 s96, s2, 2")
        e("s_add_u32 s96, s96, s%d" % sWAVE)
        e("s_lshl_b32 s96, s96, 7")
        e("s_add_u32 s96, s96, 0x%x" % (STAMP_OFF + (2 << 20) + 4 * base))
        e("s_lshl_b32 s97, s%d, %d" % (sCC, sh))
        e("s_add_u32 s96, s96, s97")
        e("s_waitcnt lgkmcnt(0)")
        e("v_mov_b32 v192, s96")
        e("v_mov_b32 v193, s94")
        e("global_store_dword v192, v193, s[16:17]")

    def gs_math():
        e("s_waitcnt vmcnt(0)")
        for k in range(8):
            u = gu + 4 * (k % 2)
            e("v_lshlrev_b32 v%d, 16, v%d" % (u, g0 + k))
            e("v_and_b32 v%d, 0xffff0000, v%d" % (u + 1, g0 + k))
            e("v_lshlrev_b32 v%d, 16, v%d" % (u + 2, g1 + k))
            e("v_and_b32 v%d, 0xffff0000, v%d" % (u + 3, g1 + k))
            e("v_pk_add_f32 v[%d:%d], v[%d:%d], v[%d:%d] neg_lo:[0,1] neg_hi:[0,1]" % (u, u + 1, u, u + 1, u + 2, u + 3))
            e("v_cvt_pk_bf16_f32 v%d, v%d, v%d" % (g0 + k, u, u + 1))
        e("buffer_store_dwordx4 v[%d:%d], v18, s[%d:%d], s%d offen sc1" % (g0, g0 + 3, SG, SG + 3, sGD))
        e("buffer_store_dwordx4 v[%d:%d], v18, s[%d:%d], s%d offen offset:16 sc1" % (g0 + 4, g0 + 7, SG, SG + 3, sGD))
        clear_slot()

    def signal(lab, p2):
        if p2:
            e("s_cmp_lg_u32 s%d, 0" % sCC)
            e("s_cbranch_scc1 %s" % lab)
        else:
            e("s_cmp_eq_u32 s%d, 0" % sCC)
            e("s_cbranch_scc1 %s" % lab)
        e("s_cmp_lg_u32 s%d, 0" % sWAVE)
        e("s_cbranch_scc1 %s" % lab)
        if p2:
            e("v_mov_b32 v192, 48")
        else:
            e("s_lshl_b32 s%d, s%d, 4" % (sT0, sCC))
            e("s_sub_u32 s%d, s%d, 16" % (sT0, sT0))
            e("v_mov_b32 v192, s%d" % sT0)
        e("v_mov_b32 v193, 1")
        e("s_mov_b64 exec, 1")
        e("buffer_store_dword v193, v192, s[%d:%d], s%d offen sc1" % (SP, SP + 3, sFL))
        if not p2:
            e("s_cmp_lg_u32 s%d, 1" % sCC)
            e("s_cbranch_scc1 %s_x" % lab)
            e("global_atomic_add v192, v193, s[14:15]")
            e.label(lab + "_x")
        e("s_mov_b64 exec, -1")
        e("s_nop 3")
        e.label(lab)

    if opts.get("xt"):
        e("s_lshl_b32 s%d, s%d, 2" % (sT1, sNT))
        e("s_add_u32 s%d, s%d, s%d" % (sT1, sT1, sWAVE))
        e("s_lshl_b32 s%d, s%d, 9" % (sT1, sT1))
        e("s_add_u32 s%d, s%d, s%d" % (sL6, sXB, sT1))
        e("v_min_u32 v19, 33, v0")
        e("v_lshlrev_b32 v19, 13, v19")
    e.c("first barrier + initial reads")
    stage(P1[7], P1[0], with_mfma=False, only_last=True)
    if opts.get("p0s", 1):
        e("s_barrier")
    stamp()
    itstamp(0)
    if GSL == 1:
        gs_loads()
    e.label("L_p1")
    for j in range(8):
        e.c("pass1 stage %d" % j)
        if j < 7:
            stage(P1[j], P1[j + 1])
        else:
            qsave = list(q.q)
            e("s_cmp_eq_u32 s%d, 3" % sCC)
            e("s_cbranch_scc1 L_p1_last")
            stage(P1[7], P1[0])
        if j == 3:
            e("s_cmp_lg_u32 s%d, 0" % sCC)
            e("s_cbranch_scc1 L_nogs")
            if GSL == 2:
                gs_loads()
            else:
                gs_math()
            e.label("L_nogs")
            signal("L_nosig", False)
            if opts.get("xt"):
                e("s_add_u32 s%d, s%d, 128" % (sL6, sL6))
                e("buffer_load_dword v194, v19, s[%d:%d], s%d offen" % (SX, SX + 3, sL6))
            itstamp(1, 3)
    e("s_cmp_lg_u32 s%d, 0" % sCC)
    e("s_cbranch_scc1 L_nodr")
    e("s_waitcnt vmcnt(0)")
    e.label("L_nodr")
    if GSL == 2:
        e("s_cmp_lg_u32 s%d, 0" % sCC)
        e("s_cbranch_scc1 L_nogs2")
        gs_math()
        e.label("L_nogs2")
    itstamp(2, 3)
    e("s_add_u32 s%d, s%d, 1" % (sCC, sCC))
    e("s_branch L_p1")
    e.label("L_p1_last")
    q.q = qsave
    stage(P1[7], P2[0])
    itstamp(2, 3)

    def pk(op, d, a, b, c=None, mods=""):
        s_ = "%s v[%d:%d], v[%d:%d], v[%d:%d]" % (op, d, d + 1, a, a + 1, b, b + 1)
        if c is not None:
            s_ += ", v[%d:%d]" % (c, c + 1)
        e(s_ + mods)

    NEG = " neg_lo:[0,1] neg_hi:[0,1]"
    NEG2 = " neg_lo:[1,1] neg_hi:[1,1]"
    for r_ in range(4):
        e("v_mov_b32_dpp v%d, v%d row_shl:1 row_mask:0xf bank_mask:0xf bound_ctrl:0" % (196 + r_, ACCB + r_))
    e("s_nop 3")
    for t in range(8):
        nxt_ = ACCB + 4 * (t + 1) if t < 7 else 196
        for hh in (0, 2):
            pk("v_pk_add_f32", ACCA + 4 * t + hh, ACCC + 4 * t + hh, nxt_ + hh)
        for hh in (0, 2):
            pk("v_pk_add_f32", ACCB + 4 * t + hh, ACCB + 4 * t + hh, ACCC + 4 * t + hh)
    vS, vM, vPV, vT = ACCC, ACCC + 4, ACCC + 8, ACCC + 12
    for r_ in range(4):
        e("v_mov_b32_dpp v%d, v%d row_newbcast:0 row_mask:0xf bank_mask:0xf" % (vPV + r_, ACCB + r_))
    fill = ["v_mov_b32 v%d, 0" % (vS + r_) for r_ in range(8)]
    for t in range(8):
        tt = vT + 4 * (t & 1)
        fill += ["v_sub_f32 v%d, v%d, v%d" % (tt + r_, ACCB + 4 * t + r_, vPV + r_) for r_ in range(4)]
        fill += ["v_add_f32 v%d, v%d, v%d" % (vS + r_, vS + r_, tt + r_) for r_ in range(4)]
        fill += ["v_fmac_f32 v%d, v%d, v%d" % (vM + r_, tt + r_, tt + r_) for r_ in range(4)]
    stamp()
    e("s_mov_b32 s%d, 0" % sCC)

    def pre(j):
        e("s_add_u32 s%d, s%d, %d" % (sSQ, sSQ, SEQ))
        e("s_cmp_ge_u32 s%d, %d" % (sSQ, 3 * SEQ))
        e("s_cselect_b32 s%d, 0, s%d" % (sSQ, sSQ))
        s_ = vXD[(j + 1) & 1]
        e("v_add_u32 v%d, s%d, v%d" % (s_[0], sSQ, vX[0]))
        e("v_add_u32 v%d, s%d, v%d" % (s_[1], sSQ, vX[1]))

    e.c("pass2 first stage (peeled, carries the statistics of the even rows)")
    qsave2 = list(q.q)
    stage(P2[0], P2[1], pre_last=lambda: pre(0), fill=fill)
    for f_ in fill:
        e(f_)
    e("s_branch L_p2_s1")
    q.q = qsave2
    e.label("L_p2")
    for j in range(4):
        e.c("pass2 stage %d" % j)
        if j == 1:
            e.label("L_p2_s1")
        stage(P2[j], P2[(j + 1) % 4], pre_last=lambda j=j: pre(j))
    signal("L_nosig2", True)
    itstamp(9)
    e("s_add_u32 s%d, s%d, 1" % (sCC, sCC))
    e("s_cmp_lt_u32 s%d, 4" % sCC)
    e("s_cbranch_scc1 L_p2")

    vP = WIN + 20
    vGF, vBF = WIN + 36, WIN + 40
    vCA, vCB = WIN + 44, WIN + 48
    vK0, vK1, vONE = WIN + 52, WIN + 54, WIN + 56
    vZ = WIN
    vN1 = 17

    def masks():
        e("s_cmp_eq_u32 s%d, 31" % sST_)
        e("s_cselect_b32 s%d, %d, 16" % (sA, LAST_VALID // 16))
        e("s_cselect_b32 s%d, %d, 15" % (sBB, LAST_VALID // 16))
        e("s_mov_b32 s%d, 0x%08x" % (sRN, f32(1.0 / TROWS)))
        e("s_cselect_b32 s%d, 0x%08x, s%d" % (sRN, f32(1.0 / LAST_VALID), sRN))
        e("v_cmp_gt_u32 s[%d:%d], s%d, v%d" % (sMF, sMF + 1, sA, vR))
        e("v_cmp_gt_u32 s[%d:%d], s%d, v%d" % (sMP, sMP + 1, sBB, vR))

    assert LAST_VALID % 16 == 0 and TROWS == 255

    def dpp_reduce(base, n):
        for sh in (8, 4, 2, 1):
            for i in range(n):
                e("v_add_f32_dpp v%d, v%d, v%d row_ror:%d row_mask:0xf bank_mask:0xf" % (base + i, base + i, base + i, sh))

    FLAG = 40960
    MAGIC = 0x5a5a1234
    c0 = -2.0 * math.log2(math.e) * math.sqrt(2.0 / math.pi)
    c1 = c0 * 0.044715

    YB = 65536
    CO = FLAG
    OST = ["", " sc1", " nt", " sc0 sc1", " sc1 nt", " sc0 sc1 nt"][opts.get("ost", 1)]
    vY8 = ACCA
    vA8, vB8 = WIN + 20, WIN + 28

    def out_setup():
        e("s_mul_i32 s%d, s%d, %d" % (sOB, sB, L * 512))
        e("s_mul_i32 s%d, s%d, %d" % (sT1, sST_, TROWS * 512))
        e("s_add_u32 s%d, s%d, s%d" % (sOB, sOB, sT1))
        e("s_add_u32 s%d, s%d, s%d" % (sOB, sOB, sN2))
        e("s_lshl_b32 s%d, s%d, 2" % (sT0, sROLE))
        e("s_add_u32 s%d, s%d, s%d" % (sT0, sT0, sWAVE))
        e("s_lshl_b32 s%d, s%d, 5" % (sT1, sT0))
        e("v_lshrrev_b32 v7, 3, v0")
        e("v_add_u32 v7, s%d, v7" % sT1)
        e("v_and_b32 v3, 7, v0")
        e("v_lshlrev_b32 v4, 9, v7")
        e("v_lshlrev_b32 v8, 4, v3")
        e("v_add_u32 v4, v4, v8")
        e("v_lshlrev_b32 v2, 5, v3")
        e("v_add_u32 v2, %d, v2" % CO)
        e("v_lshlrev_b32 v8, 8, v7")
        e("v_add_u32 v8, %d, v8" % YB)
        e("v_lshlrev_b32 v3, 1, v3")
        e("s_lshl_b32 s%d, s%d, 1" % (sT0, sT0))
        for k in range(2):
            for h in range(2):
                d = 176 + 2 * k + h
                e("v_or_b32 v%d, %d, v3" % (d, h))
                e("s_add_u32 s%d, s%d, %d" % (sT1, sT0, k))
                e("v_xor_b32 v%d, s%d, v%d" % (d, sT1, d))
                e("v_lshlrev_b32 v%d, 4, v%d" % (d, d))
                e("v_add_u32 v%d, v%d, v8" % (d, d))
        for k in (0, 1):
            e("v_mov_b32 v%d, 0x%08x" % (vK0 + k, f32(c0)))
            e("v_mov_b32 v%d, 0x%08x" % (vK1 + k, f32(c1)))
            e("v_mov_b32 v%d, 1.0" % (vONE + k))
        e("v_mov_b32 v6, %d" % (CO + 512))
        e("s_cmp_eq_u32 s%d, 31" % sST_)
        e("s_movk_i32 s%d, %d" % (sNV, TROWS))
        e("s_cselect_b32 s%d, %d, s%d" % (sNV, LAST_VALID, sNV))

    def y_reads():
        for i in range(4):
            for h in range(2):
                r_ = vY8 + 8 * i + 4 * h
                e("ds_read_b128 v[%d:%d], v%d offset:%d" % (r_, r_ + 3, 176 + 2 * (i >> 1) + h, 8 * i * 256))

    def sweep():
        e("buffer_load_dwordx4 v[%d:%d], v1, s[%d:%d], s%d offen sc1" % (vP, vP + 3, SP, SP + 3, sPB))
        e("buffer_load_dwordx4 v[%d:%d], v1, s[%d:%d], s%d offen offset:64 sc1" % (vP + 4, vP + 7, SP, SP + 3, sPB))
        e("buffer_load_dwordx4 v[%d:%d], v1, s[%d:%d], s%d offen offset:2048 sc1" % (vP + 8, vP + 11, SP, SP + 3, sPB))
        e("buffer_load_dwordx4 v[%d:%d], v1, s[%d:%d], s%d offen offset:2112 sc1" % (vP + 12, vP + 15, SP, SP + 3, sPB))

    sYB = sL6
    e.c("epilogue")
    e("s_mov_b32 s%d, %d" % (sYB, YB))
    e("s_waitcnt lgkmcnt(0) vmcnt(0)")
    stamp()
    if opts.get("esw", 0):
        e("v_lshlrev_b32 v1, 7, v%d" % vR)
        e("v_add_u32 v1, v1, v%d" % vPO)
        sweep()
    masks()
    for t in range(8):
        if t == 7:
            e("s_mov_b64 exec, s[%d:%d]" % (sMP, sMP + 1))
        tt = vT + 4 * (t & 1)
        for hh in (0, 2):
            pk("v_pk_add_f32", tt + hh, ACCA + 4 * t + hh, vPV + hh, mods=NEG)
        for hh in (0, 2):
            pk("v_pk_add_f32", vS + hh, vS + hh, tt + hh)
            pk("v_pk_fma_f32", vM + hh, tt + hh, tt + hh, vM + hh)
    e("s_mov_b64 exec, -1")
    for r_ in range(8):
        e("v_cndmask_b32 v%d, 0, v%d, s[%d:%d]" % (vS + r_, vS + r_, sMF, sMF + 1))
    dpp_reduce(vS, 8)
    for r_ in range(4):
        e("v_mul_f32 v%d, s%d, v%d" % (vT + r_, sRN, vS + r_))
    for r_ in range(4):
        e("v_fma_f32 v%d, -v%d, v%d, v%d" % (vM + r_, vT + r_, vS + r_, vM + r_))
        e("v_add_f32 v%d, v%d, v%d" % (vS + r_, vPV + r_, vT + r_))
    for r_ in range(4):
        e("v_max_f32 v%d, 0, v%d" % (vM + r_, vM + r_))
    for r_ in range(8):
        e("v_or_b32 v%d, 1, v%d" % (vS + r_, vS + r_))
    e("v_cmp_eq_u32 vcc, 0, v%d" % vR)
    e("s_and_saveexec_b64 s[%d:%d], vcc" % (sC0, sC0 + 1))
    e("buffer_store_dwordx4 v[%d:%d], v%d, s[%d:%d], s%d offen sc1" % (vS, vS + 3, vPO, SP, SP + 3, sSL))
    e("buffer_store_dwordx4 v[%d:%d], v%d, s[%d:%d], s%d offen offset:64 sc1" % (vM, vM + 3, vPO, SP, SP + 3, sSL))
    e("s_mov_b64 exec, -1")
    if not opts.get("esw", 0):
        e("v_lshlrev_b32 v1, 7, v%d" % vR)
        e("v_add_u32 v1, v1, v%d" % vPO)
        sweep()
    stamp()
    e("s_lshl_b32 s%d, s%d, 2" % (sT0, sWAVE))
    e("v_add_u32 v5, s%d, v%d" % (sT0, vG))
    e("v_xor_b32 v5, v5, v%d" % vR)
    e("v_lshlrev_b32 v5, 4, v5")
    e("v_lshlrev_b32 v3, 12, v%d" % vR)
    e("v_add3_u32 v5, v5, v3, s%d" % sYB)
    for t in range(8):
        e("ds_write_b128 v5, v[%d:%d] offset:%d" % (ACCB + 4 * t, ACCB + 4 * t + 3, 2 * t * 256))
        e("ds_write_b128 v5, v[%d:%d] offset:%d" % (ACCA + 4 * t, ACCA + 4 * t + 3, (2 * t + 1) * 256))
    out_setup()
    e("s_lshl_b32 s%d, s%d, 2" % (sT0, sWAVE))
    e("v_add_u32 v9, s%d, v6" % sT0)
    e("v_mov_b32 v3, 0")
    e("ds_write_b32 v9, v3")
    e("s_waitcnt lgkmcnt(0)")
    e("s_barrier")
    y_reads()
    e("v_mov_b32 v%d, 0x%08x" % (vN1, f32(float(TROWS))))
    e("v_mov_b32 v3, 0x%08x" % f32(float(LAST_VALID)))
    e("v_cmp_eq_u32 vcc, 15, v%d" % vR)
    e("v_lshlrev_b32 v%d, 16, v%d" % (vGF + 0, vGAM))
    e("v_and_b32 v%d, 0xffff0000, v%d" % (vGF + 1, vGAM))
    e("v_cndmask_b32 v%d, v%d, v3, vcc" % (vN1, vN1))
    e("v_lshlrev_b32 v%d, 16, v%d" % (vGF + 2, vGAM + 1))
    e("v_and_b32 v%d, 0xffff0000, v%d" % (vGF + 3, vGAM + 1))
    e("v_lshlrev_b32 v%d, 16, v%d" % (vBF + 0, vBET))
    e("v_and_b32 v%d, 0xffff0000, v%d" % (vBF + 1, vBET))
    e("v_lshlrev_b32 v%d, 16, v%d" % (vBF + 2, vBET + 1))
    e("v_and_b32 v%d, 0xffff0000, v%d" % (vBF + 3, vBET + 1))
    sOW0, sOW1 = 56, 58
    e("s_and_b32 s%d, s%d, 15" % (sT0, sST_))
    e("v_cmp_eq_u32 s[%d:%d], s%d, v%d" % (sOW0, sOW0 + 1, sT0, vR))
    e("s_cmp_ge_u32 s%d, 16" % sST_)
    e("s_cselect_b64 s[%d:%d], s[%d:%d], 0" % (sOW1, sOW1 + 1, sOW0, sOW0 + 1))
    e("s_cselect_b64 s[%d:%d], 0, s[%d:%d]" % (sOW0, sOW0 + 1, sOW0, sOW0 + 1))
    e("s_mov_b32 s%d, 0" % sCNT)
    e("s_waitcnt vmcnt(%d)" % (2 if opts.get("esw", 0) else 0))
    e("s_branch L_poll_chk")
    e.label("L_poll")
    if opts.get("mpoll", 1):
        e("s_mov_b64 exec, vcc")
    sweep()
    e("s_mov_b64 exec, -1")
    e("s_waitcnt vmcnt(0)")
    e.label("L_poll_chk")
    e("s_add_u32 s%d, s%d, 1" % (sCNT, sCNT))
    for i in range(8):
        e("v_cndmask_b32 v%d, v%d, v%d, s[%d:%d]" % (vP + i, vP + i, vS + i, sOW0, sOW0 + 1))
        e("v_cndmask_b32 v%d, v%d, v%d, s[%d:%d]" % (vP + 8 + i, vP + 8 + i, vS + i, sOW1, sOW1 + 1))
    e("v_and_b32 v3, v%d, v%d" % (vP, vP + 1))
    for i in range(2, 16, 2):
        e("v_and_b32 v5, v%d, v%d" % (vP + i, vP + i + 1))
        e("v_and_b32 v3, v3, v5")
    e("v_and_b32 v3, 1, v3")
    e("v_cmp_eq_u32 vcc, 0, v3")
    e("s_cmp_ge_u32 s%d, 0x200000" % sCNT)
    e("s_cbranch_scc1 L_poll_done")
    e("s_cbranch_vccnz L_poll")
    e.label("L_poll_done")
    stamp()
    e("s_mov_b32 s%d, 0x%08x" % (sT1, f32(float(TROWS))))
    e("s_mov_b32 s%d, 0x%08x" % (sT2, f32(1.0 / L)))
    for r_ in range(4):
        e("v_mul_f32 v%d, s%d, v%d" % (vS + r_, sT1, vP + r_))
    for r_ in range(4):
        e("v_fmac_f32 v%d, v%d, v%d" % (vS + r_, vN1, vP + 8 + r_))
    for r_ in range(4):
        e("v_add_f32 v%d, v%d, v%d" % (vM + r_, vP + 4 + r_, vP + 12 + r_))
    dpp_reduce(vS, 4)
    for r_ in range(4):
        e("v_mul_f32 v%d, s%d, v%d" % (vS + r_, sT2, vS + r_))
    for r_ in range(4):
        e("v_sub_f32 v%d, v%d, v%d" % (vT + r_, vP + r_, vS + r_))
        e("v_sub_f32 v%d, v%d, v%d" % (vT + 4 + r_, vP + 8 + r_, vS + r_))
    for r_ in range(4):
        e("v_mul_f32 v%d, v%d, v%d" % (vT + r_, vT + r_, vT + r_))
        e("v_mul_f32 v%d, v%d, v%d" % (vT + 4 + r_, vT + 4 + r_, vT + 4 + r_))
    for r_ in range(4):
        e("v_fmac_f32 v%d, s%d, v%d" % (vM + r_, sT1, vT + r_))
    for r_ in range(4):
        e("v_fmac_f32 v%d, v%d, v%d" % (vM + r_, vN1, vT + 4 + r_))
    e("s_nop 0")
    dpp_reduce(vM, 4)
    e("v_mov_b32 v3, 0x%08x" % f32(1e-5))
    for r_ in range(4):
        e("v_fma_f32 v%d, v%d, s%d, v3" % (vM + r_, vM + r_, sT2))
    for r_ in range(4):
        e("v_rsq_f32 v%d, v%d" % (vM + r_, vM + r_))
    e("s_nop 0")
    for r_ in range(4):
        e("v_mul_f32 v%d, v%d, v%d" % (vCA + r_, vM + r_, vGF + r_))
    for r_ in range(4):
        e("v_fma_f32 v%d, -v%d, v%d, v%d" % (vCB + r_, vS + r_, vCA + r_, vBF + r_))
    e("s_lshl_b32 s%d, s%d, 6" % (sT0, sWAVE))
    e("s_add_u32 s%d, s%d, %d" % (sT0, sT0, CO))
    e("v_add_u32 v5, s%d, v%d" % (sT0, vPO))
    e("v_cmp_eq_u32 vcc, 0, v%d" % vR)
    e("v_mov_b32 v3, 0x%08x" % MAGIC)
    e("s_mov_b64 exec, vcc")
    e("ds_write_b128 v5, v[%d:%d]" % (vCA, vCA + 3))
    e("ds_write_b128 v5, v[%d:%d] offset:256" % (vCB, vCB + 3))
    e("ds_write_b32 v9, v3")
    e("s_mov_b64 exec, -1")
    e.label("L_final")
    e("s_mov_b32 s%d, 0" % sCNT)
    e.label("L_mbox")
    e("ds_read_b128 v[%d:%d], v6" % (vZ, vZ + 3))
    e("s_add_u32 s%d, s%d, 1" % (sCNT, sCNT))
    e("s_waitcnt lgkmcnt(0)")
    e("v_and_b32 v%d, v%d, v%d" % (vZ, vZ, vZ + 1))
    e("v_and_b32 v%d, v%d, v%d" % (vZ + 2, vZ + 2, vZ + 3))
    e("v_and_b32 v%d, v%d, v%d" % (vZ, vZ, vZ + 2))
    e("s_cmp_ge_u32 s%d, 0x4000000" % sCNT)
    e("v_readfirstlane_b32 s%d, v%d" % (sT0, vZ))
    e("s_cbranch_scc1 L_mbox_d")
    e("s_cmp_lg_u32 s%d, 0x%08x" % (sT0, MAGIC))
    e("s_cbranch_scc1 L_mbox")
    e.label("L_mbox_d")
    for h in range(2):
        e("ds_read_b128 v[%d:%d], v2 offset:%d" % (vA8 + 4 * h, vA8 + 4 * h + 3, 16 * h))
        e("ds_read_b128 v[%d:%d], v2 offset:%d" % (vB8 + 4 * h, vB8 + 4 * h + 3, 256 + 16 * h))
    e("s_waitcnt lgkmcnt(0)")
    for i in range(4):
        y = vY8 + 8 * i
        z = vZ + 8 * (i % 2)
        o = ACCB + 4 * i
        e("v_add_u32 v3, %d, v7" % (8 * i))
        e("v_cmp_gt_u32 vcc, s%d, v3" % sNV)
        if not DEBUG_H:
            for hh in (0, 2, 4, 6):
                pk("v_pk_fma_f32", y + hh, y + hh, vA8 + hh, vB8 + hh)
            for hh in (0, 2, 4, 6):
                pk("v_pk_mul_f32", z + hh, y + hh, y + hh)
            for hh in (0, 2, 4, 6):
                pk("v_pk_fma_f32", z + hh, z + hh, vK1, vK0)
            for hh in (0, 2, 4, 6):
                pk("v_pk_mul_f32", z + hh, z + hh, y + hh)
            for r_ in range(8):
                e("v_exp_f32 v%d, v%d" % (z + r_, z + r_))
            for hh in (0, 2, 4, 6):
                pk("v_pk_add_f32", z + hh, z + hh, vONE)
            for r_ in range(8):
                e("v_rcp_f32 v%d, v%d" % (z + r_, z + r_))
            for hh in (0, 2, 4, 6):
                pk("v_pk_mul_f32", y + hh, y + hh, z + hh)
        for k in range(4):
            e("v_cvt_pk_bf16_f32 v%d, v%d, v%d" % (o + k, y + 2 * k, y + 2 * k + 1))
        e("s_add_u32 s%d, s%d, %d" % (sT0, sOB, 4096 * i))
        e("s_mov_b64 exec, vcc")
        e("buffer_store_dwordx4 v[%d:%d], v4, s[%d:%d], s%d offen%s" % (o, o + 3, SO, SO + 3, sT0, OST))
        e("s_mov_b64 exec, -1")
    if STAMP:
        e("s_cmp_eq_u32 s%d, 1" % sROLE)
        e("s_cbranch_scc1 L_end")
        stamp()
        e("s_waitcnt vmcnt(0)")
        stamp()
        e("s_lshl_b32 s%d, s2, 2" % sT0)
        e("s_add_u32 s%d, s%d, s%d" % (sT0, sT0, sWAVE))
        e("s_lshl_b32 s%d, s%d, 7" % (sT0, sT0))
        e("s_add_u32 s%d, s%d, 0x%x" % (sT0, sT0, STAMP_OFF))
        e("v_mov_b32 v1, s%d" % sT0)
        e("s_mov_b64 exec, 1")
        for i in range(8):
            e("v_mov_b32 v2, s%d" % (sST + 2 * i))
            e("v_mov_b32 v3, s%d" % (sST + 2 * i + 1))
            e("global_store_dwordx2 v1, v[2:3], s[16:17] offset:%d" % (8 * i))
    e("s_endpgm")

    idx_l = len(e.lines)
    vLW, vXO, vSL, vSO = 1, 2, 3, 5
    RA, UT, RS = 120, 144, 160
    vSI = 4
    sMW, sMX, sWC, sX1, sS2, sSI, sSO_ = sL0, sL1, sL2, sL3, sL4, sL5, sL6
    sG2, sSB, sSQ2, sMS, sID = sA, sBB, sNV, sRN, sOB
    sXB0, sSB0 = sLH, sDT
    e("s_setprio %d" % opts.get("lprio", 0))
    TAPO = [0, 2, 1, 3]

    def late_setup():
        more_srds()
        e("v_lshlrev_b32 v%d, 4, v0" % vSL)
        e("v_lshrrev_b32 v22, 2, v21")
        e("v_mul_u32_u24 v22, %d, v22" % S_CC)
        e("v_lshlrev_b32 v23, 6, v20")
        e("v_add_u32 v22, v22, v23")
        e("v_and_b32 v23, 3, v21")
        e("v_lshlrev_b32 v23, 4, v23")
        e("v_add_u32 v%d, v22, v23" % vSO)
        e("s_mul_i32 s%d, s%d, %d" % (sSB, sGM, S_GM))
        e("s_lshl_b32 s%d, s%d, 10" % (sT0, sWAVE))
        e("s_add_u32 s%d, s%d, s%d" % (sS2, sSB, sT0))
        e("s_lshl_b32 s%d, s%d, 2" % (sID, sWAVE))
        e("s_add_u32 s%d, s%d, s%d" % (sID, sID, sNT))
        e("s_and_b32 s%d, s%d, 1" % (sT0, sID))
        e("s_lshl_b32 s%d, s%d, 5" % (sT1, sT0))
        e("v_xor_b32 v6, s%d, v%d" % (sT1, vSO))
        e("s_lshl_b32 s%d, s%d, 14" % (sT1, sID))
        e("s_add_u32 s%d, s%d, s%d" % (sXB0, sXB, sT1))
        e("s_lshl_b32 s%d, s%d, 9" % (sT1, sID))
        e("s_add_u32 s%d, s%d, s%d" % (sSB0, sSB, sT1))
        e("s_lshr_b32 s%d, s%d, 1" % (sID, sID))
        e("s_lshl_b32 s%d, s%d, 9" % (sSI, sT0))
        e("s_add_u32 s%d, s%d, s%d" % (sSI, sSI, sXB))
        e("s_mul_i32 s%d, s%d, %d" % (sSO_, sT0, S_P))
        e("s_add_u32 s%d, s%d, s%d" % (sSO_, sSO_, sSB))
        e("s_mov_b32 s%d, s%d" % (sG2, sN2))
        e("s_mov_b32 s%d, 0" % sSQ2)
        e("s_mul_i32 s%d, s%d, %d" % (sMS, sWAVE, XBLK))
        e("v_mov_b32 v7, 0")
        e("s_lshl_b32 s%d, s%d, 7" % (sCC, sGM))
        e("s_add_u32 s%d, s%d, %d" % (sCC, sCC, FL_OFF))

    def stage_desc(m):
        return P1[m % 8] if m < 32 else P2[(m - 32) % 4]

    last_use = {}
    wsched = {}
    LEAD = 3
    for m in range(48):
        st = stage_desc(m)
        for i in range(st["n"]):
            sl = st["slots"][i]
            if sl == 31 and sl not in last_use:
                last_use[sl] = 31
            free = last_use[sl] + 1 if sl in last_use else -1
            at = max(free, m - LEAD, -1)
            wsched.setdefault(at, []).append((m, i))
            last_use[sl] = m

    def it_wt(items, m, i, base1, base2):
        st = stage_desc(m)
        items.append(("t", "s_add_u32 m0, s%d, %d" % (sMW, wslot_addr(st["slots"][i]))))
        if m < 32:
            C = m // 8
            off = (C - base1) * 32768 + st["kh"] * 16384 + (4 * i + TAPO[st["j"]]) * 131072
            items.append(("t", "s_add_u32 s%d, s%d, %d" % (sT0, sWC, off)))
            items.append(("v", ("W", m), "buffer_load_dwordx4 v%d, s[%d:%d], s%d offen lds" % (vLW, SW, SW + 3, sT0)))
        else:
            cc, p = divmod(m - 32, 2)
            off = (cc - base2) * 16384 + (p * 8 + i) * 131072
            items.append(("t", "s_add_u32 s%d, s%d, %d" % (sT0, sG2, off)))
            items.append(("v", ("W", m), "buffer_load_dwordx4 v%d, s[%d:%d], s%d offen sc1 lds" % (vLW, SG, SG + 3, sT0)))

    def it_x1(items, sq, base1):
        C, j = divmod(sq, 4)
        rel = TAPO[j] * 512 + (C - base1) * 128
        buf = (j & 1) * YBUF
        tag = ("X", 2 * sq)
        for mm in range(4):
            items.append(("t", "s_add_u32 m0, s%d, %d" % (sMX, buf + 4 * mm * YBLK)))
            items.append(("t", "s_add_u32 s%d, s%d, %d" % (sT0, sX1, mm * 65536 + rel)))
            items.append(("v", tag, "buffer_load_dwordx4 v%d, s[%d:%d], s%d offen lds" % (vXO, SX, SX + 3, sT0)))
        items.append(("t", "s_mov_b32 m0, %d" % (buf + 16 * YBLK)))
        items.append(("t", "s_add_u32 s%d, s%d, %d" % (sT0, sXB, 16 * 16384 + rel)))
        items.append(("t", "s_mov_b32 exec_hi, 0xffffff"))
        items.append(("v", tag, "buffer_load_dwordx4 v%d, s[%d:%d], s%d offen lds" % (vXO, SX, SX + 3, sT0)))
        items.append(("t", "s_mov_b32 exec_hi, -1"))

    def it_x2(items, m, base2, part="all", sq_back=False):
        if m > 47:
            return
        cc, p = divmod(m - 32, 2)
        rel = p * S_P + (cc - base2) * S_CC
        if part in ("all", "main"):
            items.append(("t", "s_add_u32 s%d, s%d, s%d" % (sT1, sMS, sSQ2)))
            for ap in range(2):
                items.append(("t", "s_add_u32 m0, s%d, %d" % (sT1, ap * 4 * XBLK)))
                items.append(("t", "s_add_u32 s%d, s%d, %d" % (sT0, sS2, ap * 4096 + rel)))
                items.append(("v", ("X", m), "buffer_load_dwordx4 v%d, s[%d:%d], s%d offen sc1 lds" % (vSL, SS, SS + 3, sT0)))
        if part in ("all", "halo"):
            items.append(("t", "s_add_u32 m0, s%d, %d" % (sSQ2, 8 * XBLK)))
            items.append(("t", "s_add_u32 s%d, s%d, %d" % (sT0, sSB, 8 * 1024 + rel)))
            items.append(("t", "s_mov_b64 exec, 0xfffffff"))
            items.append(("v", ("X", m), "buffer_load_dwordx4 v%d, s[%d:%d], s%d offen sc1 lds" % (vSL, SS, SS + 3, sT0)))
            items.append(("t", "s_mov_b64 exec, -1"))
            items.append(("t", "s_add_u32 s%d, s%d, %d" % (sSQ2, sSQ2, SEQ)))
            items.append(("t", "s_cmp_ge_u32 s%d, %d" % (sSQ2, 3 * SEQ)))
            items.append(("t", "s_cselect_b32 s%d, 0, s%d" % (sSQ2, sSQ2)))

    def it_sload(items, C, kind):
        ra, rb = RA + 8 * kind, RA + 8 * kind + 4
        if kind < 2:
            items.append(("t", "s_add_u32 s%d, s%d, %d" % (sT0, sXB0, C * 128 + kind * 512)))
            for (r_, o_) in ((ra, 1024), (rb, 2048)):
                items.append(("v", ("SL", C, kind), "buffer_load_dwordx4 v[%d:%d], v%d, s[%d:%d], s%d offen offset:%d" %
                              (r_, r_ + 3, vXO, SX, SX + 3, sT0, o_)))
        else:
            items.append(("t", "s_cmp_lg_u32 s%d, %d" % (sID, C)))
            items.append(("t", "s_cbranch_scc1 L_hl%d" % C))
            items.append(("t", "s_add_u32 s%d, s%d, %d" % (sT0, sSI, 16 * 16384 + C * 128)))
            for (r_, o_) in ((ra, 1024), (rb, 2048)):
                items.append(("t", "buffer_load_dwordx4 v[%d:%d], v%d, s[%d:%d], s%d offen offset:%d" %
                              (r_, r_ + 3, vXO, SX, SX + 3, sT0, o_)))
            items.append(("lab", "L_hl%d" % C))
            items.append(("mark", ("SL", C, kind)))

    def it_sfin(items, C, kind):
        Tt = lambda s_: items.append(("t", s_))
        ra, rb = RA + 8 * kind, RA + 8 * kind + 4
        if kind == 2:
            Tt("s_cmp_lg_u32 s%d, %d" % (sID, C))
            Tt("s_cbranch_scc1 L_hf%d" % C)
            items.append(("wm", ("SL", C, kind)))
        else:
            items.append(("w", [("SL", C, kind)]))
        for k in range(4):
            u = UT + 4 * k
            Tt("v_lshlrev_b32 v%d, 16, v%d" % (u, ra + k))
            Tt("v_and_b32 v%d, 0xffff0000, v%d" % (u + 1, ra + k))
            Tt("v_lshlrev_b32 v%d, 16, v%d" % (u + 2, rb + k))
            Tt("v_and_b32 v%d, 0xffff0000, v%d" % (u + 3, rb + k))
        for k in range(4):
            u = UT + 4 * k
            Tt("v_pk_add_f32 v[%d:%d], v[%d:%d], v[%d:%d] neg_lo:[0,1] neg_hi:[0,1]" % (u, u + 1, u, u + 1, u + 2, u + 3))
        for k in range(4):
            u = UT + 4 * k
            Tt("v_cvt_pk_bf16_f32 v%d, v%d, v%d" % (RS + 4 * kind + k, u, u + 1))
        if kind < 2:
            Tt("s_add_u32 s%d, s%d, %d" % (sT0, sSB0, kind * S_P + 2 * C * S_CC))
            items.append(("v", ("SS", C), "buffer_store_dwordx4 v[%d:%d], v6, s[%d:%d], s%d offen sc1" %
                          (RS + 4 * kind, RS + 4 * kind + 3, SS, SS + 3, sT0)))
        else:
            Tt("s_add_u32 s%d, s%d, %d" % (sT0, sSO_, 2 * C * S_CC + 8192))
            Tt("buffer_store_dwordx4 v[%d:%d], v%d, s[%d:%d], s%d offen sc1" % (RS + 8, RS + 11, vSO, SS, SS + 3, sT0))
            items.append(("lab", "L_hf%d" % C))
            items.append(("mark", ("SH", C)))

    SD = opts.get("sd", 0)
    s_load_at, s_fin_at = {}, {}
    for C in range(4):
        for kind, off in ((0, 2 + SD), (1, 6), (2, 7)):
            s_load_at.setdefault(8 * C + off, []).append((C, kind))
            s_fin_at.setdefault(8 * C + off + 2, []).append((C, kind))

    def barrier(items, n):
        if n <= 47:
            need = [("W", n), ("X", n)]
        else:
            need = "all"
        if n >= 12 and (n - 12) % 8 == 0 and (n - 12) // 8 < 4:
            items.append(("wm", ("SH", (n - 12) // 8)))
        items.append(("w", need))
        items.append(("t", "s_barrier"))

    first_p2 = min(n for n, l in wsched.items() if any(m >= 32 for m, i in l))
    poll_at = {first_p2: 0, 34: 1, 38: 2, 42: 3}

    sFP = sCC

    def poll_issue(items, C):
        if C == 0:
            items.append(("v", ("PG", 0), "global_load_dword v21, v7, s[14:15] sc1"))
        else:
            items.append(("v", ("PL", C), "buffer_load_dwordx4 v[24:27], v7, s[%d:%d], s%d offen offset:%d sc1" % (SP, SP + 3, sFP, 16 * C)))

    def spin(items, lab, first_wait, load, reduce_, target):
        items.append(first_wait)
        items.append(("t", "s_mov_b32 s%d, 0" % sCNT))
        items.append(("t", "s_branch %s_c" % lab))
        items.append(("lab", lab))
        items.append(("t", load))
        items.append(("t", "s_waitcnt vmcnt(0)"))
        items.append(("lab", lab + "_c"))
        for r_ in reduce_:
            items.append(("t", r_))
        items.append(("t", "s_add_u32 s%d, s%d, 1" % (sCNT, sCNT)))
        items.append(("t", "v_readfirstlane_b32 s%d, v21" % sT0))
        items.append(("t", "s_cmp_ge_u32 s%d, 0x200000" % sCNT))
        items.append(("t", "s_cbranch_scc1 %s_d" % lab))
        items.append(("t", "s_cmp_lt_u32 s%d, %d" % (sT0, target)))
        items.append(("t", "s_cbranch_scc1 %s" % lab))
        items.append(("lab", lab + "_d"))

    def poll(items, C):
        fl = "buffer_load_dwordx4 v[24:27], v7, s[%d:%d], s%d offen offset:%d sc1" % (SP, SP + 3, sFP, 16 * C)
        red = ["v_and_b32 v21, v24, v25", "v_and_b32 v22, v26, v27", "v_and_b32 v21, v21, v22"]
        if C == 0:
            spin(items, "L_gpoll", ("w", [("PG", 0)]), "global_load_dword v21, v7, s[14:15] sc1", [], 256)
        else:
            spin(items, "L_fpoll%d" % C, ("w", [("PL", C)]), fl, red, 1)

    def slot_items(n, base1, base2):
        items = []
        if n in poll_at:
            poll(items, poll_at[n])
        if n + 1 in poll_at:
            poll_issue(items, poll_at[n + 1])
        for (C, kind) in s_load_at.get(n, []):
            it_sload(items, C, kind)
        if n % 2 == 0 and n // 2 + 1 < 16 and n >= 0:
            it_x1(items, n // 2 + 1, base1)
        if n == 30:
            it_x2(items, 32, base2)
        elif n == 31:
            it_x2(items, 33, base2, part="main")
        elif n == 32:
            it_x2(items, 33, base2, part="halo")
            it_x2(items, 34, base2)
        elif n > 32:
            it_x2(items, n + 2, base2)
        for (m, i) in wsched.get(n, []):
            it_wt(items, m, i, base1, base2)
        for (C, kind) in s_fin_at.get(n, []):
            it_sfin(items, C, kind)
        barrier(items, n + 1)
        return items

    pro = []
    it_x1(pro, 0, 0)
    assert wsched[-1] == [(m, i) for m in range(3) for i in range(8)]
    for m in range(3):
        st = P1[m]
        assert st["slots"] == list(range(8 * m, 8 * m + 8))
        pro.append(("t", "s_add_u32 m0, s%d, %d" % (sMW, wslot_addr(8 * m))))
        pro.append(("t", "s_add_u32 s%d, s%d, %d" % (sT0, sWC, st["kh"] * 16384 + TAPO[st["j"]] * 131072)))
        pro.append(("t", "s_mov_b32 s%d, 0" % sT1))
        pro.append(("lab", "L_pw%d" % m))
        pro.append(("t", "buffer_load_dwordx4 v%d, s[%d:%d], s%d offen lds" % (vLW, SW, SW + 3, sT0)))
        pro.append(("t", "s_add_u32 m0, m0, %d" % WSTEP))
        pro.append(("t", "s_add_u32 s%d, s%d, %d" % (sT0, sT0, 4 * 131072)))
        pro.append(("t", "s_add_u32 s%d, s%d, 1" % (sT1, sT1)))
        pro.append(("t", "s_cmp_lt_u32 s%d, 8" % sT1))
        pro.append(("t", "s_cbranch_scc1 L_pw%d" % m))
        for i in range(8):
            pro.append(("vq", ("W0", 0) if (m == 0 and i < 2) else ("W", m)))
    pro.append(("late",))
    if opts.get("p0s", 1):
        pro.append(("w", [("W0", 0), ("X", 0)]))
        pro.append(("t", "s_barrier"))
    barrier(pro, 0)
    blocks = [pro]
    for n in range(48):
        blocks.append(slot_items(n, 0, 0))
    qv = []
    for items in blocks:
        for k, itx in enumerate(items):
            if itx[0] in ("v", "vq"):
                qv.append(itx[1])
            elif itx[0] == "mark":
                qv.append(("M",) + itx[1])
            elif itx[0] in ("w", "wm"):
                tags = itx[1] if itx[0] == "w" else [("M",) + itx[1]]
                if tags == "all":
                    n, idx = 0, len(qv) - 1
                else:
                    idx = -1
                    for i, t in enumerate(qv):
                        if t in tags:
                            idx = i
                    n = sum(1 for t in qv[idx + 1:] if t[0] != "M") if idx >= 0 else 63
                n = min(n, 63)
                if itx[0] == "w" or itx[1][0] == "SH":
                    if idx >= 0:
                        qv = qv[idx + 1:]
                items[k] = ("wn", n)

    def merge(lists):
        base = lists[0]
        out = []
        for k, itx in enumerate(base):
            if itx[0] == "wn":
                out.append(("wn", min(l[k][1] for l in lists)))
            else:
                for l in lists:
                    assert l[k][0] == itx[0] and l[k][-1] == itx[-1], (l[k], itx)
                out.append(itx)
        return out

    def put(items):
        for itx in items:
            if itx[0] == "t":
                e(itx[1])
            elif itx[0] == "v":
                e(itx[2])
            elif itx[0] == "lab":
                e.label(itx[1])
            elif itx[0] == "drain":
                e("s_waitcnt vmcnt(0)")
            elif itx[0] == "wn":
                e("s_waitcnt vmcnt(%d)" % itx[1])
            elif itx[0] == "late":
                late_setup()

    for blk in blocks:
        put(blk)
    e.c("loader joins the epilogue")
    out_setup()
    e("s_barrier")
    y_reads()
    e("s_branch L_final")
    idx_e = len(e.lines)
    e.lines = e.lines[:idx_c] + e.lines[idx_l:idx_e] + e.lines[idx_c:idx_l]
    e.label("L_end")
    e("s_endpgm")

    hdr = """; Kernarg layout for this problem (56 bytes, ptrs only, base s[0:1]):
;   offset   0: d_in[0] x  shape=(2, 16000, 256) dtype=bfloat16
;   offset   8: d_in[1] w  shape=(31, 256, 256) dtype=bfloat16
;   offset  16: d_in[2] gn_gamma  shape=(256,) dtype=bfloat16
;   offset  24: d_in[3] gn_beta  shape=(256,) dtype=bfloat16
;   offset  32: d_out     shape=(2, 7985, 256) dtype=bfloat16
;   offset  40: d_debug   256 bytes
;   offset  48: d_ws      workspace
; Generated by my own script work/gen11.py.
; conv1d(k=31, stride 2) as an implicit GEMM on bf16 MFMA (fp32 accumulate), using the exact 2-parallel fast-FIR
; identity per tap parity p (E[k]=x[4k+p], O[k]=x[4k+2+p], G0[i]=w[4i+p], G1[i]=w[4i+2+p]):
;   P0=sum E[k+i]G0[i], P1=sum O[k+i]G1[i], Pd=sum (O[k+i]-E[k+i+1])(G0[i]-G1[i])
;   h[2k]=P0[k]+P1[k],  h[2k+1]=Pd[k]+P1[k]+P0[k+1]
; then per-(batch,channel) mean/variance over time (per-tile mean/M2 exchanged through d_ws, combined with Chan's
; formula), affine and tanh-GELU, all in one launch.  256 workgroups (one per CU, tile 255 rows x 64 channels):
; waves 0-3 MFMA consumers, waves 4-7 LDS-DMA loaders.  d_debug[0] counts workgroups that prepared their share.
; @launch grid=(256,1,1) block=(512,1,1) lds=%d
.amdgcn_target "amdgcn-amd-amdhsa--gfx950"
.text
.globl %s_kernel
.p2align 8
.type %s_kernel,@function
%s_kernel:
""" % (LDS_TOTAL, NAME, NAME, NAME)
    ftr = """.section .rodata,"a"
.p2align 6
.amdhsa_kernel %s_kernel
  .amdhsa_next_free_vgpr 200
  .amdhsa_next_free_sgpr 100
  .amdhsa_accum_offset 200
  .amdhsa_group_segment_fixed_size 0
  .amdhsa_kernarg_size 56
  .amdhsa_user_sgpr_count 2
  .amdhsa_user_sgpr_kernarg_segment_ptr 1
  .amdhsa_system_sgpr_workgroup_id_x 1
.end_amdhsa_kernel
""" % NAME
    return hdr + e.text() + ftr


if __name__ == "__main__":
    opts = {}
    out = "cdna_kernels/%s.s" % NAME
    for a in sys.argv[1:]:
        if a.startswith("-o"):
            out = a[2:]
        elif "=" in a:
            k, v = a.split("=")
            opts[k] = int(v)
        else:
            opts[a] = True
    open(out, "w").write(gen(opts))
    print("wrote", out)
```
